```python
import torch

def _softmax(x, axis=-1):
    return torch.softmax(x, dim=axis)
def _gelu(x):
    return torch.nn.functional.gelu(x, approximate="tanh")
def _silu(x):
    return torch.nn.functional.silu(x)
def _sigmoid(x):
    return torch.sigmoid(x)
def _layernorm(x, axis=-1, eps=1e-5):
    m = x.mean(dim=axis, keepdim=True)
    v = x.var(dim=axis, keepdim=True, unbiased=False)
    return (x - m) / torch.sqrt(v + eps)
def _scatter_add(tgt, idx, src, axis=0):
    return tgt.clone().index_add_(axis, idx, src)
def _segment_sum(src, seg, n):
    out = torch.zeros((n,) + src.shape[1:], dtype=src.dtype)
    return out.index_add_(0, seg, src)
def _pad(x, pw):
    flat = tuple(v for pair in reversed(pw) for v in pair)
    return torch.nn.functional.pad(x, flat)

kernel_name = 'standalone__standard_2d_1d_3d_conv__vision'

def setup_inputs():

    _w = (lambda a: (lambda t: t.to(torch.bfloat16) if t.is_floating_point() else t)(torch.as_tensor(a)))
    H = W = 384
    C = 192
    K = 1
    return {
        "x": _w((lambda *s: torch.randn(*s, dtype=torch.bfloat16) * 0.05)(1, H, W, C)),
        "w": _w((lambda *s: torch.randn(*s, dtype=torch.bfloat16) * 0.05)(K, K, C, C)),
        "b": _w((lambda *s: torch.randn(*s, dtype=torch.bfloat16) * 0.05)(C)),
    }

def reference(x, w, b):
    B, H, W, Cin = x.shape
    K = w.shape[0]
    pl = (K - 1) // 2
    pr = K // 2
    xp = _pad(x, ((0, 0), (pl, pr), (pl, pr), (0, 0)))
    out = sum(
        torch.einsum('bhwc,cd->bhwd', xp[:, i:i+H, j:j+W, :], w[i, j])
        for i in range(K) for j in range(K)
    )
    return out + b[None, None, None, :]
```

```python
import sys
NAME = "standalone__standard_2d_1d_3d_conv__vision"
HDR = open('cdna_kernels/%s.s.ref' % NAME).read().split('; Override launch')[0]

def gen(ld_flags="", st_flags="", dbl_round=False):
    L = []
    e = L.append
    NW = 12
    W_BASE = 0
    BIAS_BASE = 73728
    SLOT_BASE = 74752
    LDS = SLOT_BASE + NW * 6144
    e(HDR.rstrip('\n'))
    e("; Override launch geometry by editing the next line (default: block=256,")
    e("; @launch grid=(256,1,1) block=(768,1,1) lds=%d" % LDS)
    e('.amdgcn_target "amdgcn-amd-amdhsa--gfx950"')
    e(".text")
    e(".globl %s_kernel" % NAME)
    e(".p2align 8")
    e(".type %s_kernel,@function" % NAME)
    e("%s_kernel:" % NAME)
    vL16 = 1; vXW = [2,3,4,5,6,7]; vXR0 = 8; vXR1 = 9; vOW0 = 10; vOW1 = 11; vOR = 12; vST = 13; vBias = 14; vWF = 15
    X = 16
    ACC = 88
    WF = 136
    BI = 152
    T0 = 160; T1 = 161; T2 = 162; T3 = 163; T4=164; T5=165
    NV = 166
    def q(b): return "v[%d:%d]" % (b, b+3)
    e("    s_cmp_ge_u32 s2, 256")
    e("    s_cbranch_scc1 L_end")
    e("    s_load_dwordx4 s[4:7], s[0:1], 0      ; x, w")
    e("    s_load_dwordx4 s[24:27], s[0:1], 16   ; b, out")
    e("    v_lshrrev_b32 v%d, 6, v0" % T0)
    e("    v_and_b32 v%d, 63, v0" % T1)
    e("    v_readfirstlane_b32 s3, v%d" % T0)
    e("    v_lshlrev_b32 v%d, 4, v%d" % (vL16, T1))
    e("    v_mul_u32_u24 v%d, 2731, v0" % T2)
    e("    v_lshrrev_b32 v%d, 16, v%d" % (T2, T2))
    e("    v_mul_u32_u24 v%d, 2688, v%d" % (T3, T2))
    e("    v_lshl_add_u32 v%d, v0, 4, v%d" % (T3, T3))
    e("    s_mul_i32 s28, s2, 12")
    e("    s_add_u32 s28, s28, s3")
    e("    s_mul_i32 s28, s28, 18432")
    e("    s_add_u32 s29, s28, 4096")
    e("    s_add_u32 s30, s28, 8192")
    e("    s_add_u32 s31, s28, 12288")
    e("    s_add_u32 s32, s28, 16384")
    e("    s_mov_b32 s10, 56623104")
    e("    s_mov_b32 s11, 0x00020000")
    e("    s_mov_b32 s14, 73728")
    e("    s_mov_b32 s15, 0x00020000")
    e("    s_mov_b32 s18, 384")
    e("    s_mov_b32 s19, 0x00020000")
    e("    s_mov_b32 s22, 56623104")
    e("    s_mov_b32 s23, 0x00020000")
    e("    s_waitcnt lgkmcnt(0)")
    e("    s_mov_b32 s8, s4")
    e("    s_mov_b32 s9, s5")
    e("    s_mov_b32 s12, s6")
    e("    s_mov_b32 s13, s7")
    e("    s_mov_b32 s16, s24")
    e("    s_mov_b32 s17, s25")
    e("    s_mov_b32 s20, s26")
    e("    s_mov_b32 s21, s27")
    WIN = ACC
    WOUT = ACC + 32
    e("    s_cmp_ge_u32 s3, 9")
    e("    s_cbranch_scc1 L_now")
    for r in range(8):
        e("    buffer_load_dwordx4 %s, v%d, s[12:15], 0 offen offset:%d" % (q(WIN+4*r), T3, r*384))
    e("    s_branch L_xload")
    e("L_now:")
    e("    v_lshlrev_b32 v%d, 3, v%d" % (T4, T1))
    e("    buffer_load_dwordx2 v[%d:%d], v%d, s[16:19], 0 offen" % (WIN, WIN+1, T4))
    e("L_xload:")
    for i in range(18):
        e("    buffer_load_dwordx4 %s, v%d, s[8:11], s%d offen offset:%d%s" % (q(X+4*i), vL16, 28 + i//4, (i%4)*1024, ld_flags))
    e("    s_mul_i32 s33, s3, 6144")
    e("    s_add_u32 s33, s33, %d               ; slot base" % SLOT_BASE)
    for i in range(6):
        e("    v_add_u32 v%d, %d, v%d" % (T4, 64*i, T1))
        e("    v_mul_u32_u24 v%d, 2731, v%d" % (T5, T4))
        e("    v_bfe_u32 v%d, v%d, 17, 3" % (T5, T5))
        e("    v_xor_b32 v%d, v%d, v%d" % (T4, T4, T5))
        e("    v_lshl_add_u32 v%d, v%d, 4, s33" % (vXW[i], T4))
    e("    v_lshrrev_b32 v%d, 4, v%d" % (T4, T1))
    e("    v_and_b32 v%d, 15, v%d" % (T5, T1))
    e("    v_lshrrev_b32 v%d, 1, v%d" % (vXR0, T5))
    e("    v_xor_b32 v%d, v%d, v%d" % (vXR0, vXR0, T4))
    e("    v_mul_u32_u24 v%d, 24, v%d" % (vXR1, T5))
    e("    v_add_u32 v%d, v%d, v%d" % (vXR0, vXR0, vXR1))
    e("    v_lshlrev_b32 v%d, 4, v%d" % (vXR0, vXR0))
    e("    v_xor_b32 v%d, 64, v%d" % (vXR1, vXR0))
    e("    v_add_u32 v%d, s33, v%d" % (vXR0, vXR0))
    e("    v_add_u32 v%d, s33, v%d" % (vXR1, vXR1))
    e("    v_and_b32 v%d, 7, v%d" % (vOW0, T5))
    e("    v_xor_b32 v%d, v%d, v%d" % (vOW0, vOW0, T4))
    e("    v_lshlrev_b32 v%d, 4, v%d" % (vOW0, vOW0))
    e("    v_lshl_add_u32 v%d, v%d, 7, v%d" % (vOW0, T5, vOW0))
    e("    v_xor_b32 v%d, 64, v%d" % (vOW1, vOW0))
    e("    v_add_u32 v%d, s33, v%d" % (vOW0, vOW0))
    e("    v_add_u32 v%d, s33, v%d" % (vOW1, vOW1))
    e("    v_lshlrev_b32 v%d, 5, v%d" % (vBias, T4))
    e("    v_add_u32 v%d, %d, v%d" % (vBias, BIAS_BASE, vBias))
    e("    v_lshrrev_b32 v%d, 3, v%d" % (T4, T1))
    e("    v_and_b32 v%d, 7, v%d" % (T5, T1))
    e("    v_xor_b32 v%d, v%d, v%d" % (vOR, T4, T5))
    e("    v_lshlrev_b32 v%d, 4, v%d" % (vOR, vOR))
    e("    v_lshl_add_u32 v%d, v%d, 7, v%d" % (vOR, T4, vOR))
    e("    v_add_u32 v%d, s33, v%d" % (vOR, vOR))
    e("    v_mul_u32_u24 v%d, 384, v%d" % (vST, T4))
    e("    v_lshl_add_u32 v%d, v%d, 4, v%d" % (vST, T5, vST))
    e("    v_mov_b32 v%d, v%d" % (vWF, vL16))
    e("    v_mul_u32_u24 v%d, 24, v%d" % (T4, T2))
    e("    v_sub_u32 v%d, v0, v%d" % (T4, T4))
    e("    v_lshrrev_b32 v%d, 2, v%d" % (T5, T4))
    e("    v_mul_u32_u24 v%d, 12288, v%d" % (T5, T5))
    e("    v_lshl_add_u32 v%d, v%d, 8, v%d" % (T5, T2, T5))
    e("    v_and_b32 v%d, 3, v%d" % (T4, T4))
    e("    v_lshl_add_u32 v%d, v%d, 6, v%d" % (T5, T4, T5))
    e("    s_mov_b32 s34, 0x05040100")
    e("    s_mov_b32 s35, 0x07060302")
    e("    s_add_u32 s36, s28, 6144")
    e("    s_add_u32 s37, s28, 12288")
    e("    s_cmp_ge_u32 s3, 9")
    e("    s_cbranch_scc1 L_now2")
    e("    s_waitcnt vmcnt(18)")
    for ep in range(8):
        for qq in range(4):
            e("    v_perm_b32 v%d, v%d, v%d, s%d" % (WOUT+4*ep+qq, WIN+4*(2*qq+1)+(ep>>1), WIN+4*(2*qq)+(ep>>1), 34+(ep&1)))
    for ep in range(8):
        t = ep >> 2; ee = ep & 3
        e("    ds_write_b128 v%d, %s offset:%d" % (T5, q(WOUT+4*ep), t*6144 + ee*16))
    e("    s_branch L_bar")
    e("L_now2:")
    e("    s_cmp_lg_u32 s3, 9")
    e("    s_cbranch_scc1 L_bar")
    e("    s_waitcnt vmcnt(18)")
    e("    v_lshlrev_b32 v%d, 16, v%d" % (WOUT, WIN))
    e("    v_and_b32 v%d, 0xffff0000, v%d" % (WOUT+1, WIN))
    e("    v_lshlrev_b32 v%d, 16, v%d" % (WOUT+2, WIN+1))
    e("    v_and_b32 v%d, 0xffff0000, v%d" % (WOUT+3, WIN+1))
    e("    v_add_u32 v%d, %d, v%d" % (T4, BIAS_BASE, vL16))
    e("    ds_write_b128 v%d, %s" % (T4, q(WOUT)))
    e("L_bar:")
    e("    s_waitcnt lgkmcnt(0)")
    e("    s_barrier")
    for t in range(3):
        e("    s_waitcnt vmcnt(%d)" % (12 - 6*t))
        for i in range(6):
            e("    ds_write_b128 v%d, %s" % (vXW[i], q(X + 24*t + 4*i)))
        for s in range(6):
            e("    ds_read_b128 %s, v%d offset:%d" % (q(X + 24*t + 4*s), vXR1 if (s&1) else vXR0, 128*(s>>1)))
    def acc(Tp, t): return ACC + (Tp*3 + t)*4
    for Q in range(3):
        woff = lambda f: (f*1024)
        pend = []
        def rdW(f):
            e("    ds_read_b128 %s, v%d offset:%d" % (q(WF + 4*(f%4)), vWF, woff(f)))
            pend.append(('W', f))
        def rdB(Tp):
            T = 4*Q + Tp; P = T>>1; tt = T&1
            e("    ds_read_b128 %s, v%d offset:%d" % (q(BI + 4*(Tp&1)), vBias, 128*P + 16*tt))
            pend.append(('B', Tp))
        def waitfor(tags):
            idx = max(i for i, p in enumerate(pend) if p in tags) if any(p in tags for p in pend) else -1
            if idx >= 0:
                n = len(pend) - 1 - idx
                e("    s_waitcnt lgkmcnt(%d)" % n)
                del pend[:idx+1]
        if Q == 0:
            pend.append(('X', 0))
        rdB(0); rdW(0); rdW(1); rdW(2)
        for f in range(24):
            Tp = f//6; s = f%6
            if f+3 < 24: rdW(f+3)
            if s == 2 and Tp < 3: rdB(Tp+1)
            need = [('W', f)]
            if s == 0: need.append(('B', Tp))
            waitfor(need)
            for t in range(3):
                c = q(BI + 4*(Tp&1)) if s == 0 else q(acc(Tp, t))
                e("    v_mfma_f32_16x16x32_bf16 %s, %s, %s, %s" % (q(acc(Tp, t)), q(WF + 4*(f%4)), q(X + 24*t + 4*s), c))
        if Q < 2:
            e("    v_add_u32 v%d, 24576, v%d" % (vWF, vWF))
        for pp in range(2):
            if pp == 1:
                e("    s_nop 7")
            for t in range(3):
                a = acc(2*pp, t); b = acc(2*pp+1, t)
                e("    v_cvt_pk_bf16_f32 v%d, v%d, v%d" % (a, a, a+1))
                e("    v_cvt_pk_bf16_f32 v%d, v%d, v%d" % (a+1, a+2, a+3))
                e("    v_cvt_pk_bf16_f32 v%d, v%d, v%d" % (a+2, b, b+1))
                e("    v_cvt_pk_bf16_f32 v%d, v%d, v%d" % (a+3, b+2, b+3))
                e("    ds_write_b128 v%d, %s offset:%d" % (vOW1 if pp else vOW0, q(a), t*2048))
        dst = [acc(1,0), acc(1,1), acc(1,2), acc(3,0), acc(3,1), acc(3,2)]
        for u in range(6):
            e("    ds_read_b128 %s, v%d offset:%d" % (q(dst[u]), vOR, u*1024))
        for u in range(6):
            e("    s_waitcnt lgkmcnt(%d)" % (5-u))
            sreg = [28, 36, 37][u>>1]
            e("    buffer_store_dwordx4 %s, v%d, s[20:23], s%d offen offset:%d%s" % (q(dst[u]), vST, sreg, (u&1)*3072 + Q*128, st_flags))
    e("L_end:")
    e("    s_endpgm")
    e('.section .rodata,"a"')
    e(".p2align 6")
    e(".amdhsa_kernel %s_kernel" % NAME)
    e("  .amdhsa_next_free_vgpr %d" % NV)
    e("  .amdhsa_next_free_sgpr 48")
    e("  .amdhsa_accum_offset %d" % ((NV+3)//4*4))
    e("  .amdhsa_group_segment_fixed_size 0")
    e("  .amdhsa_kernarg_size 48")
    e("  .amdhsa_user_sgpr_count 2")
    e("  .amdhsa_user_sgpr_kernarg_segment_ptr 1")
    e("  .amdhsa_system_sgpr_workgroup_id_x 1")
    e(".end_amdhsa_kernel")
    return "\n".join(L) + "\n"

if __name__ == "__main__":
    out = sys.argv[1]
    ld = sys.argv[2] if len(sys.argv) > 2 else ""
    st = sys.argv[3] if len(sys.argv) > 3 else ""
    open(out, "w").write(gen(ld_flags=(" " + ld) if ld else "", st_flags=(" " + st) if st else ""))
```

```python
import sys
NAME = "standalone__standard_2d_1d_3d_conv__vision"
HDR = open('cdna_kernels/%s.s.ref' % NAME).read().split('; Override launch')[0]

SLOT = 6144
SET = 4*SLOT
XS = 0
OS = 2*SET
WB = SET
BRAW = 4*SET
LDS = BRAW + 1024

def gen(ld_flags=" nt", st_flags=" sc1", stamps=False, order="x0,w,x1", quota=(8,)*9, hprio=3, w_flags="", dbl=False, pre2=1, nomfma=False, perm=None, quota_odd=None, touch=None, pst=False):
    L = []
    e = L.append
    e(HDR.rstrip('\n'))
    e("; Override launch geometry by editing the next line (default: block=256,")
    e("; @launch grid=(256,1,1) block=(512,1,1) lds=%d" % LDS)
    e('.amdgcn_target "amdgcn-amd-amdhsa--gfx950"')
    e(".text")
    e(".globl %s_kernel" % NAME)
    e(".p2align 8")
    e(".type %s_kernel,@function" % NAME)
    e("%s_kernel:" % NAME)
    def q(b): return "v[%d:%d]" % (b, b+3)
    pend = []; vm = []
    def lds(tag, text):
        e(text); pend.append(tag)
    def waitl(tags):
        idxs = [i for i, p in enumerate(pend) if p in tags]
        if idxs:
            idx = max(idxs); n = len(pend) - 1 - idx
            e("    s_waitcnt lgkmcnt(%d)" % min(n, 15))
            del pend[:idx+1]
    def waitl_all():
        e("    s_waitcnt lgkmcnt(0)"); del pend[:]
    def vmem(tag, text):
        e(text); vm.append(tag)
    def waitv(tags):
        idxs = [i for i, p in enumerate(vm) if p in tags]
        if idxs:
            idx = max(idxs); n = len(vm) - 1 - idx
            e("    s_waitcnt vmcnt(%d)" % min(n, 63))
            del vm[:idx+1]
    def stamp(k):
        if stamps:
            e("    s_memrealtime s[%d:%d]" % (48+2*k, 49+2*k))
            e("    s_waitcnt lgkmcnt(0)")
            del pend[:]
    T0=1; T1=2; T2=3; T3=4; T4=5; T5=6
    e("    s_cmp_ge_u32 s2, 256")
    e("    s_cbranch_scc1 L_end")
    stamp(0)
    e("    s_load_dwordx4 s[4:7], s[0:1], 0      ; x, w")
    e("    s_load_dwordx4 s[24:27], s[0:1], 16   ; b, out")
    if stamps:
        e("    s_load_dwordx2 s[40:41], s[0:1], 40")
        for k in range(1, 16): e("    s_mov_b32 s%d, s48" % (48+2*k))
    e("    v_lshrrev_b32 v%d, 6, v0" % T0)
    e("    v_and_b32 v%d, 63, v0" % T1)
    e("    v_readfirstlane_b32 s3, v%d" % T0)
    e("    s_mov_b32 s10, 56623104")
    e("    s_mov_b32 s11, 0x00020000")
    e("    s_mov_b32 s14, 73728")
    e("    s_mov_b32 s15, 0x00020000")
    e("    s_cmp_lt_u32 s3, 4")
    e("    s_cbranch_scc1 L_compute")
    vXG = [8,9,10,11,12,13]; vLo = 14; vLx = 15; vLin = 7
    BUF = 16
    if hprio: e("    s_setprio %d" % hprio)
    for i in range(6):
        e("    v_add_u32 v%d, %d, v%d" % (T2, 64*i, T1))
        e("    v_mul_u32_u24 v%d, 2731, v%d" % (T2, T2))
        e("    v_bfe_u32 v%d, v%d, 16, 2" % (T3, T2))
        e("    v_bfe_u32 v%d, v%d, 19, 1" % (T2, T2))
        e("    v_lshl_or_b32 v%d, v%d, 2, v%d" % (T2, T2, T3))
        e("    v_xor_b32 v%d, v%d, v%d" % (T2, T2, T1))
        e("    v_lshlrev_b32 v%d, 4, v%d" % (vXG[i], T2))
    e("    s_sub_u32 s3, s3, 4                   ; h")
    e("    s_mul_i32 s29, s3, 6144               ; h*SLOT")
    if perm == "x1":
        e("    s_xor_b32 s36, s2, 1")
    elif perm == "xcdc":
        e("    s_lshr_b32 s36, s2, 3")
        e("    s_and_b32 s35, s2, 7")
        e("    s_lshl_b32 s35, s35, 5")
        e("    s_or_b32 s36, s36, s35")
    else:
        e("    s_mov_b32 s36, s2")
    e("    s_mul_i32 s28, s36, 221184")
    e("    s_add_u32 s28, s28, s29")
    e("    s_mul_i32 s30, s3, 18432")
    e("    s_waitcnt lgkmcnt(0)")
    e("    s_mov_b32 s8, s4")
    e("    s_mov_b32 s9, s5")
    e("    s_mov_b32 s12, s6")
    e("    s_mov_b32 s13, s7")
    def dma(tag, srd, sg, goff, sl, loff, flags):
        e("    s_add_u32 m0, s%d, %d" % (sl, loff))
        e("    s_add_u32 s31, s%d, %d" % (sg, goff))
        for i in range(4):
            vmem(tag, "    buffer_load_dwordx4 v%d, %s, s31 offen offset:%d%s lds" % (vXG[i], srd, i*1024, flags))
        e("    s_add_u32 m0, s%d, %d" % (sl, loff + 4096))
        e("    s_add_u32 s32, s%d, %d" % (sg, goff + 4096))
        for i in range(4, 6):
            vmem(tag, "    buffer_load_dwordx4 v%d, %s, s32 offen offset:%d%s lds" % (vXG[i], srd, (i-4)*1024, flags))
    def gop(kind, r, i):
        if i == 0:
            e("    s_add_u32 s33, s28, %d" % (r*SET))
            e("    s_add_u32 s34, s28, %d" % (r*SET + 4096))
        so = 33 if i < 4 else 34
        off = (i%4)*1024 if i < 4 else (i-4)*1024
        if kind == 'L':
            vmem(('X', r), "    buffer_load_dwordx4 %s, v%d, s[8:11], s%d offen offset:%d%s" % (q(BUF + 24*r + 4*i), vXG[i], so, off, ld_flags))
        else:
            waitl([('C', r, i)])
            vmem(('S', r), "    buffer_store_dwordx4 %s, v%d, s[20:23], s%d offen offset:%d%s" % (q(BUF + 24*r + 4*i), vXG[i], so, off, st_flags))
    ops = [('L', r, i) for r in range(9) for i in range(6)] + [('S', r, i) for r in range(9) for i in range(6)]
    collected = set()
    def issue(n):
        for _ in range(n):
            if not ops: return
            k, r, i = ops[0]
            if k == 'S' and r not in collected: return
            ops.pop(0)
            gop(k, r, i)
    if pst: e("    s_memrealtime s[68:69]")
    for o in order.split(","):
        if o == 'w' and pst: e("    s_memrealtime s[66:67]")
        if o[0] == 'x': issue(6)
        elif o == 'w':
            e("    s_mov_b32 s16, s24")
            e("    s_mov_b32 s17, s25")
            e("    s_mov_b32 s18, 384")
            e("    s_mov_b32 s19, 0x00020000")
            e("    v_lshlrev_b32 v%d, 4, v%d" % (vLin, T1))
            e("    s_mov_b32 m0, %d" % BRAW)
            e("    s_nop 0")
            vmem(('W',), "    buffer_load_dwordx4 v%d, s[16:19], 0 offen lds      ; bias (all helpers write the same bytes)" % vLin)
            for a in range(3): dma(('W',), "s[12:15]", 30, a*SLOT, 30, WB + a*SLOT, w_flags)
    e("    s_mov_b32 s20, s26")
    e("    s_mov_b32 s21, s27")
    e("    s_mov_b32 s22, 56623104")
    e("    s_mov_b32 s23, 0x00020000")
    e("    v_lshl_add_u32 v%d, v%d, 4, s29" % (vLx, T1))
    e("    v_add_u32 v%d, %d, v%d" % (vLo, OS, vLx))
    def do_touch():
        e("    v_mul_u32_u24 v%d, 3456, v%d" % (T4, T1))
        e("    s_sub_u32 s35, s28, s29")
        vmem(('T',), "    buffer_load_dword v%d, v%d, s[20:23], s35 offen nt" % (T5, T4))
    if touch == "pro": do_touch()
    def feed(r):
        waitv([('X', r)])
        for i in range(6):
            lds(('F', r), "    ds_write_b128 v%d, %s offset:%d" % (vLx, q(BUF + 24*r + 4*i), XS + (r&1)*SET + i*1024))
    def collect(r):
        for i in range(6):
            lds(('C', r, i), "    ds_read_b128 %s, v%d offset:%d" % (q(BUF + 24*r + 4*i), vLo, (r&1)*SET + i*1024))
        collected.add(r)
    feed(0)
    waitv([('W',)])
    stamp(1)
    e("    s_barrier                             ; B1")
    issue(6*pre2)
    waitl_all()
    variants = [quota] if quota_odd is None else [quota, quota_odd]
    if quota_odd is not None:
        e("    s_getreg_b32 s37, hwreg(HW_REG_XCC_ID, 0, 1)")
        e("    s_cmp_eq_u32 s37, 1")
        e("    s_cbranch_scc1 L_hodd")
    saved = (list(ops), set(collected), list(pend), list(vm))
    for vi, quo in enumerate(variants):
        if vi: e("L_hodd:")
        ops[:] = list(saved[0]); collected.clear(); collected.update(saved[1]); pend[:] = saved[2]; vm[:] = saved[3]
        for r in range(9):
            e("    s_barrier                             ; R%d" % r)
            if not (pst and r >= 7): stamp(2 + r)
            if r >= 1: collect(r-1)
            if r + 1 <= 8: feed(r+1)
            if touch == r: do_touch()
            issue(quo[r])
            waitl_all()
        e("    s_barrier                             ; F")
        stamp(11)
        collect(8)
        issue(200)
        if stamps:
            stamp(13)
            e("    s_waitcnt vmcnt(0)")
            stamp(14)
            e("    s_add_u32 s3, s3, 4")
        e("    s_branch L_fin")
    pend[:] = []; vm[:] = []
    e("L_compute:")
    vXR0 = 8; vXR1 = 9; vOW = [12,13,14,15,16,17]; vBR = 10
    W = 20
    BIAS = 164
    XF = [188, 212]
    ACC = 236
    TMP = 252
    TR = XF[0]
    def wq(Tp, s): return q(W + 4*(Tp*6+s))
    def wh(Tp, s, h): return "v[%d:%d]" % (W + 4*(Tp*6+s) + 2*h, W + 4*(Tp*6+s) + 2*h + 1)
    e("    s_and_b32 s28, s3, 1                  ; hN")
    e("    s_lshr_b32 s29, s3, 1                 ; p")
    e("    s_mul_i32 s30, s28, 192")
    e("    s_add_u32 s30, s30, %d" % BRAW)
    e("    v_lshrrev_b32 v%d, 4, v%d" % (T4, T1))
    e("    v_lshl_add_u32 v%d, v%d, 3, s30" % (vBR, T4))
    e("    s_mul_i32 s31, s29, 12288             ; 2p*SLOT")
    e("    v_and_b32 v%d, 15, v%d" % (T5, T1))
    e("    v_lshrrev_b32 v%d, 1, v%d" % (T2, T5))
    e("    v_and_b32 v%d, 4, v%d" % (T2, T2))
    e("    v_and_or_b32 v%d, v%d, 3, v%d" % (T2, T5, T2))
    e("    v_mul_u32_u24 v%d, 384, v%d" % (T3, T5))
    e("    v_add_u32 v%d, s31, v%d" % (T3, T3))
    e("    v_xor_b32 v%d, v%d, v%d" % (vXR0, T4, T2))
    e("    v_lshl_add_u32 v%d, v%d, 4, v%d" % (vXR0, vXR0, T3))
    e("    v_xor_b32 v%d, 64, v%d" % (vXR1, vXR0))
    e("    v_lshrrev_b32 v%d, 1, v%d" % (T0, T4))
    e("    v_xor_b32 v%d, v%d, v%d" % (T2, T2, T0))
    e("    v_lshlrev_b32 v%d, 4, v%d" % (T2, T2))
    e("    v_and_b32 v%d, 1, v%d" % (T5, T4))
    e("    v_lshl_add_u32 v%d, v%d, 3, v%d" % (T3, T5, T3))
    e("    v_add_u32 v%d, %d, v%d" % (T3, OS, T3))
    e("    s_mul_i32 s32, s28, 6")
    for Tp in range(6):
        e("    s_add_u32 s33, s32, %d" % Tp)
        e("    s_and_b32 s34, s33, 3")
        e("    s_lshl_b32 s%d, s34, 5" % (86+Tp))
        e("    s_lshr_b32 s33, s33, 2")
        e("    s_lshl_b32 s%d, s33, 7" % (80+Tp))
        e("    v_xor_b32 v%d, s%d, v%d" % (vOW[Tp], 86+Tp, T2))
        e("    v_add3_u32 v%d, v%d, s%d, v%d" % (vOW[Tp], vOW[Tp], 80+Tp, T3))
    e("    v_bfe_u32 v%d, v%d, 2, 2" % (T3, T1))
    e("    v_lshl_add_u32 v%d, v%d, 2, v%d" % (T2, T5, T3))
    e("    v_lshl_add_u32 v%d, v%d, 3, v%d" % (T3, T5, T3))
    e("    v_mul_u32_u24 v%d, 384, v%d" % (T3, T3))
    e("    v_mul_u32_u24 v%d, 6144, v%d" % (T0, T0))
    e("    v_add_u32 v%d, v%d, v%d" % (T3, T3, T0))
    e("    v_bfe_u32 v%d, v%d, 1, 1" % (T0, T1))
    e("    v_xor_b32 v%d, v%d, v%d" % (T2, T2, T0))
    e("    v_lshlrev_b32 v%d, 4, v%d" % (T2, T2))
    e("    v_and_b32 v%d, 1, v%d" % (T0, T1))
    e("    v_lshl_add_u32 v%d, v%d, 3, v%d" % (T3, T0, T3))
    e("    v_add_u32 v%d, %d, v%d" % (T3, WB, T3))
    for Tp in range(6):
        e("    v_xor_b32 v%d, s%d, v%d" % (TR+Tp, 86+Tp, T2))
        e("    v_add3_u32 v%d, v%d, s%d, v%d" % (TR+Tp, TR+Tp, 80+Tp, T3))
    e("    s_mov_b32 s34, 0")
    e("    s_waitcnt lgkmcnt(0)")
    e("    s_barrier                             ; B1")
    stamp(1)
    for Tp in range(6):
        lds(('B',), "    ds_read_b64 v[%d:%d], v%d offset:%d" % (BIAS+4*Tp+2, BIAS+4*Tp+3, vBR, 32*Tp))
    n = 0
    for Tp in range(6):
        for s in range(6):
            for h in range(2):
                lds(('WT',), "    ds_read_b64_tr_b16 %s, v%d offset:%d" % (wh(Tp, s, h), TR+Tp, s*12288 + 1536*h))
                n += 1
                if n == 12:
                    waitl([('B',)])
                    for Tq in range(6):
                        b = BIAS + 4*Tq
                        e("    v_lshlrev_b32 v%d, 16, v%d" % (b, b+2))
                        e("    v_and_b32 v%d, 0xffff0000, v%d" % (b+1, b+2))
                        e("    v_lshlrev_b32 v%d, 16, v%d" % (b+2, b+3))
                        e("    v_and_b32 v%d, 0xffff0000, v%d" % (b+3, b+3))
    waitl_all()
    e("L_loop:")
    for par in range(2):
        e("    s_barrier                             ; R(r)")
        for tb in range(2):
            for s in range(6):
                lds(('XR', tb, s), "    ds_read_b128 %s, v%d offset:%d" % (q(XF[tb] + 4*s), vXR1 if (s&1) else vXR0, XS + par*SET + tb*SLOT + 128*(s>>1)))
        def epi_ops(U):
            tb = U//6; Tp = U%6
            a = ACC + 4*(U%4)
            o = []
            if dbl:
                b = BIAS + 4*Tp
                o.append("    v_cvt_pk_bf16_f32 v%d, v%d, v%d" % (TMP, a, a+1))
                o.append("    v_cvt_pk_bf16_f32 v%d, v%d, v%d" % (TMP+1, a+2, a+3))
                o.append("    v_lshlrev_b32 v%d, 16, v%d" % (a, TMP))
                o.append("    v_and_b32 v%d, 0xffff0000, v%d" % (a+1, TMP))
                o.append("    v_lshlrev_b32 v%d, 16, v%d" % (a+2, TMP+1))
                o.append("    v_and_b32 v%d, 0xffff0000, v%d" % (a+3, TMP+1))
                for k in range(4): o.append("    v_add_f32 v%d, v%d, v%d" % (a+k, a+k, b+k))
            o.append("    v_cvt_pk_bf16_f32 v%d, v%d, v%d" % (a, a, a+1))
            o.append("    v_cvt_pk_bf16_f32 v%d, v%d, v%d" % (a+1, a+2, a+3))
            o.append(('OW', "    ds_write_b64 v%d, v[%d:%d] offset:%d" % (vOW[Tp], a, a+1, par*SET + tb*SLOT)))
            return o
        def emit(o):
            if isinstance(o, tuple): lds((o[0],), o[1])
            else: e(o)
        fill = []
        for U in range(12):
            tb = U//6; Tp = U%6
            for s in range(6):
                if Tp == 0: waitl([('XR', tb, s)])
                a = ACC + 4*(U%4)
                if s == 0: c = "0" if dbl else q(BIAS + 4*Tp)
                else: c = q(a)
                e("    v_mfma_f32_16x16x32_bf16 %s, %s, %s, %s" % (q(a), wq(Tp, s), q(XF[tb] + 4*s), c))
                if s == 1 and U >= 2: fill.extend(epi_ops(U-2))
                per = 3 if dbl else 3
                for _ in range(per):
                    if fill: emit(fill.pop(0))
        while fill: emit(fill.pop(0))
        e("    s_nop 1")
        for o in epi_ops(10): emit(o)
        e("    s_nop 2")
        for o in epi_ops(11): emit(o)
        waitl_all()
        if par == 0:
            e("    s_cmp_eq_u32 s34, 8")
            e("    s_cbranch_scc1 L_cdone")
        else:
            e("    s_add_u32 s34, s34, 2")
            e("    s_branch L_loop")
    e("L_cdone:")
    e("    s_barrier                             ; F")
    stamp(11)
    e("L_fin:")
    if stamps:
        e("    s_mov_b32 s78, 0")
        e("    s_getreg_b32 s72, hwreg(HW_REG_XCC_ID, 0, 4)")
        e("    s_mul_i32 s72, s72, 100")
        e("    s_add_u32 s72, s72, s48")
        e("    s_mov_b32 s42, 0x100000")
        e("    s_mov_b32 s43, 0x00020000")
        e("    s_lshl_b32 s37, s2, 3")
        e("    s_add_u32 s37, s37, s3")
        e("    s_lshl_b32 s37, s37, 6")
        e("    s_mov_b64 exec, 1")
        e("    v_mov_b32 v1, 0")
        for k in range(16):
            e("    v_mov_b32 v2, s%d" % (48+2*k))
            e("    buffer_store_dword v2, v1, s[40:43], s37 offen offset:%d" % (4*k))
            e("    s_nop 1")
    e("L_end:")
    e("    s_endpgm")
    e('.section .rodata,"a"')
    e(".p2align 6")
    e(".amdhsa_kernel %s_kernel" % NAME)
    e("  .amdhsa_next_free_vgpr 256")
    e("  .amdhsa_next_free_sgpr 96")
    e("  .amdhsa_accum_offset 256")
    e("  .amdhsa_group_segment_fixed_size 0")
    e("  .amdhsa_kernarg_size 48")
    e("  .amdhsa_user_sgpr_count 2")
    e("  .amdhsa_user_sgpr_kernarg_segment_ptr 1")
    e("  .amdhsa_system_sgpr_workgroup_id_x 1")
    e(".end_amdhsa_kernel")
    if nomfma: L = [l for l in L if "v_mfma" not in l]
    return "\n".join(L) + "\n"

def build(vs, bx=512, lds=LDS):
    import subprocess, json
    args = []; files = ["work/bench"]
    for k, s in vs.items():
        open(k + ".s", "w").write(s)
        subprocess.check_call(["python3", "mkco.py", k + ".s", k + ".co"], stdout=subprocess.DEVNULL)
        r = subprocess.run(["python3", "cdna_unwritten_srd_check.py", k + ".co"], capture_output=True, text=True)
        if "ok" not in r.stdout: print("CHECK:", k, r.stdout[-500:], r.stderr[-500:])
        args.append("work/%s.co $K 256 %d %d" % (k, bx, lds))
        files.append("work/%s.co" % k)
    print(" ".join(args))
    print(json.dumps(files))

if __name__ == "__main__":
    build({
      "v6": gen(),
      "v6_st": gen(stamps=True),
      "v6_dbl": gen(dbl=True),
      "v6_q9": gen(quota=(9,)*9),
      "v6_q7": gen(quota=(7,)*9),
      "v6_nomfma": gen(nomfma=True),
    })
```

```python
from gen_v6 import *
o = (9,)*9
b4 = (9,9,9,9,4,10,10,10,10)
build({
  "h_a": gen(quota=o),
  "h_b": gen(quota=b4),
  "h_c": gen(quota=o, st_flags=" sc0 sc1"),
  "h_d": gen(quota=o, ld_flags=" sc0 sc1 nt"),
  "h_e": gen(quota=o, st_flags=""),
  "h_f": gen(quota=(9,9,9,9,0,11,11,11,11), quota_odd=o),
})
```

```python
import sys
NAME = "standalone__standard_2d_1d_3d_conv__vision"
HDR = open('cdna_kernels/%s.s.ref' % NAME).read().split('; Override launch')[0]

SLOT = 6144
SET = 4*SLOT
XS = 0
OS = 2*SET
WB = SET
BRAW = 4*SET
LDS = BRAW + 1024

G1 = [dict(order="x6,b,w18,x6", pre2=6, quota=(9,)*9)]

def gen(ld_flags=" nt", st_flags=" sc1", stamps=False, groups=G1, hprio=3, cprio=None, hpat="old", spread=True,
        amap="sweep", cst=False, cyc=False, nomfma=False, lead=1):
    L = []
    e = L.append
    e(HDR.rstrip('\n'))
    e("; Override launch geometry by editing the next line (default: block=256,")
    e("; @launch grid=(256,1,1) block=(512,1,1) lds=%d" % LDS)
    e('.amdgcn_target "amdgcn-amd-amdhsa--gfx950"')
    e(".text")
    e(".globl %s_kernel" % NAME)
    e(".p2align 8")
    e(".type %s_kernel,@function" % NAME)
    e("%s_kernel:" % NAME)
    def q(b): return "v[%d:%d]" % (b, b+3)
    pend = []; vm = []
    def lds(tag, text):
        e(text); pend.append(tag)
    def waitl(tags):
        idxs = [i for i, p in enumerate(pend) if p in tags]
        if idxs:
            idx = max(idxs); n = len(pend) - 1 - idx
            e("    s_waitcnt lgkmcnt(%d)" % min(n, 15))
            del pend[:idx+1]
    def waitl_all():
        e("    s_waitcnt lgkmcnt(0)"); del pend[:]
    def vmem(tag, text):
        e(text); vm.append(tag)
    def waitv(tags):
        idxs = [i for i, p in enumerate(vm) if p in tags]
        if idxs:
            idx = max(idxs); n = len(vm) - 1 - idx
            e("    s_waitcnt vmcnt(%d)" % min(n, 63))
            del vm[:idx+1]
    def stamp(k):
        if stamps:
            e("    s_memrealtime s[%d:%d]" % (48+2*k, 49+2*k))
            e("    s_waitcnt lgkmcnt(0)")
            del pend[:]
    T0=1; T1=2; T2=3; T3=4; T4=5; T5=6
    e("    s_cmp_ge_u32 s2, 256")
    e("    s_cbranch_scc1 L_end")
    stamp(0)
    e("    s_load_dwordx4 s[4:7], s[0:1], 0      ; x, w")
    e("    s_load_dwordx4 s[24:27], s[0:1], 16   ; b, out")
    if stamps:
        e("    s_load_dwordx2 s[40:41], s[0:1], 40")
        for k in range(1, 16): e("    s_mov_b32 s%d, s48" % (48+2*k))
    e("    v_lshrrev_b32 v%d, 6, v0" % T0)
    e("    v_and_b32 v%d, 63, v0" % T1)
    e("    v_readfirstlane_b32 s3, v%d" % T0)
    e("    s_mov_b32 s10, 56623104")
    e("    s_mov_b32 s11, 0x00020000")
    e("    s_mov_b32 s14, 73728")
    e("    s_mov_b32 s15, 0x00020000")
    e("    s_cmp_lt_u32 s3, 4")
    e("    s_cbranch_scc1 L_compute")
    vXG = [8,9,10,11,12,13]; vLo = 14; vLx = 15; vLin = 7
    BUF = 16
    if hprio: e("    s_setprio %d" % hprio)
    for i in range(3):
        e("    v_add_u32 v%d, %d, v%d" % (T2, 64*i, T1))
        e("    v_mul_u32_u24 v%d, 2731, v%d" % (T2, T2))
        e("    v_bfe_u32 v%d, v%d, 16, 2" % (T3, T2))
        e("    v_xor_b32 v%d, v%d, v%d" % (T2, T3, T1))
        e("    v_lshlrev_b32 v%d, 4, v%d" % (vXG[i], T2))
        e("    v_xor_b32 v%d, 64, v%d" % (vXG[i+3], vXG[i]))
    e("    s_sub_u32 s3, s3, 4                   ; h")
    e("    s_mul_i32 s29, s3, 6144               ; h*SLOT")
    if amap is None: gst, rofs = 221184, [r*SET for r in range(9)]
    elif amap == "sweep": gst, rofs = SET, [r*256*SET for r in range(9)]
    elif amap == "s3": gst, rofs = 3*SET, [(r//3)*256*3*SET + (r%3)*SET for r in range(9)]
    e("    s_mul_i32 s28, s2, %d" % gst)
    e("    s_add_u32 s28, s28, s29")
    e("    s_mul_i32 s30, s3, 3")
    e("    s_lshr_b32 s35, s2, 3")
    e("    s_mul_i32 s37, s35, 43")
    e("    s_lshr_b32 s37, s37, 9")
    e("    s_mul_i32 s37, s37, 12")
    e("    s_sub_u32 s37, s35, s37               ; (g>>3) mod 12")
    e("    s_add_u32 s30, s30, s37")
    for a in range(3):
        e("    s_add_u32 s37, s30, %d" % a)
        e("    s_sub_u32 s38, s37, 12")
        e("    s_cmp_ge_u32 s37, 12")
        e("    s_cselect_b32 s37, s38, s37")
        e("    s_mul_i32 s%d, s37, 6144" % (44+a))
    e("    s_mov_b32 s18, 384")
    e("    s_mov_b32 s19, 0x00020000")
    e("    s_mov_b32 s22, 56623104")
    e("    s_mov_b32 s23, 0x00020000")
    e("    v_lshlrev_b32 v%d, 4, v%d" % (vLin, T1))
    e("    v_lshl_add_u32 v%d, v%d, 4, s29" % (vLx, T1))
    e("    v_add_u32 v%d, %d, v%d" % (vLo, OS, vLx))
    ng = len(groups)
    if ng > 1: e("    s_and_b32 s35, s35, %d" % (ng-1))
    e("    s_waitcnt lgkmcnt(0)")
    e("    s_mov_b32 s8, s4")
    e("    s_mov_b32 s9, s5")
    e("    s_mov_b32 s12, s6")
    e("    s_mov_b32 s13, s7")
    e("    s_mov_b32 s16, s24")
    e("    s_mov_b32 s17, s25")
    e("    s_mov_b32 s20, s26")
    e("    s_mov_b32 s21, s27")
    for g in range(1, ng):
        e("    s_cmp_eq_u32 s35, %d" % g)
        e("    s_cbranch_scc1 L_hg%d" % g)
    def gop(kind, r, i):
        if i == 0:
            e("    s_add_u32 s33, s28, %d" % (rofs[r]))
            e("    s_add_u32 s34, s28, %d" % (rofs[r] + 4096))
        so = 33 if i < 4 else 34
        off = (i%4)*1024 if i < 4 else (i-4)*1024
        if kind == 'L':
            vmem(('X', r, i), "    buffer_load_dwordx4 %s, v%d, s[8:11], s%d offen offset:%d%s" % (q(BUF + 24*r + 4*i), vXG[i], so, off, ld_flags))
        else:
            waitl([('C', r, i)])
            vmem(('S', r), "    buffer_store_dwordx4 %s, v%d, s[20:23], s%d offen offset:%d%s" % (q(BUF + 24*r + 4*i), vXG[i], so, off, st_flags))
    for gi, G in enumerate(groups):
        if gi: e("L_hg%d:" % gi)
        pend[:] = []; vm[:] = []
        ops = [('L', r, i) for r in range(9) for i in range(6)] + [('S', r, i) for r in range(9) for i in range(6)]
        collected = set()
        def issue(n):
            for _ in range(n):
                if not ops: return
                k, r, i = ops[0]
                if k == 'S' and r not in collected: return
                ops.pop(0)
                gop(k, r, i)
        wops = [(a, i) for a in range(3) for i in range(6)]
        def wissue(n):
            last = None
            for _ in range(n):
                a, i = wops.pop(0)
                grp = (a, i >= 4)
                if grp != last:
                    e("    s_add_u32 m0, s%d, %d" % (44+a, WB + (4096 if i >= 4 else 0)))
                    e("    s_add_u32 s31, s%d, %d" % (44+a, (4096 if i >= 4 else 0)))
                    last = grp
                vmem(('W',), "    buffer_load_dwordx4 v%d, s[12:15], s31 offen offset:%d lds" % (vXG[i], (i%4)*1024))
        def feed1(r, i):
            waitv([('X', r, i)])
            lds(('F', r), "    ds_write_b128 v%d, %s offset:%d" % (vLx, q(BUF + 24*r + 4*i), XS + (r&1)*SET + i*1024))
        def feed(r):
            waitv([('X', r, 5)])
            for i in range(6): feed1(r, i)
        def collect(r):
            for i in range(6):
                lds(('C', r, i), "    ds_read_b128 %s, v%d offset:%d" % (q(BUF + 24*r + 4*i), vLo, (r&1)*SET + i*1024))
            collected.add(r)
        fed0 = False
        for o in G['order'].split(","):
            if o[0] == 'x': issue(int(o[1:]))
            elif o[0] == 'w': wissue(int(o[1:]))
            elif o == 'f': feed(0); fed0 = True
            elif o == 'b':
                e("    s_mov_b32 m0, %d" % BRAW)
                e("    s_nop 0")
                vmem(('W',), "    buffer_load_dwordx4 v%d, s[16:19], 0 offen lds      ; bias (all helpers write the same bytes)" % vLin)
        assert not wops
        if not fed0: feed(0)
        waitv([('W',)])
        stamp(1)
        e("    s_barrier                             ; B1")
        issue(G['pre2'])
        waitl_all()
        for r in range(9):
            if cst: stamp(2 + r)
            e("    s_barrier                             ; R%d" % r)
            if not cst: stamp(2 + r)
            qn = G['quota'][r]
            if hpat == "old":
                if r >= 1: collect(r-1)
                if r + 1 <= 8: feed(r+1)
                issue(qn)
            else:
                n0 = len(ops)
                issue(lead)
                if r >= 1: collect(r-1)
                for k in range(6):
                    if n0 - len(ops) < qn: issue(1)
                    if r + 1 <= 8: feed1(r+1, k)
                issue(qn - (n0 - len(ops)))
            waitl_all()
        if cst: stamp(11)
        e("    s_barrier                             ; F")
        if not cst: stamp(11)
        collect(8)
        issue(200)
        if stamps:
            stamp(13)
            e("    s_waitcnt vmcnt(0)")
            stamp(14)
            e("    s_add_u32 s3, s3, 4")
            e("    s_branch L_fin")
        else:
            e("    s_endpgm")
    pend[:] = []; vm[:] = []
    e("L_compute:")
    vXR0 = 8; vXR1 = 9; vOW = [12,13,14,15,16,17]; vBR = 10
    W = 20
    BIAS = 164
    XF = [188, 212]
    ACC = 236
    TR = XF[0]
    def wq(Tp, s): return q(W + 4*(Tp*6+s))
    def wh(Tp, s, h): return "v[%d:%d]" % (W + 4*(Tp*6+s) + 2*h, W + 4*(Tp*6+s) + 2*h + 1)
    e("    s_and_b32 s28, s3, 1                  ; hN")
    e("    s_lshr_b32 s29, s3, 1                 ; p")
    e("    s_mul_i32 s30, s28, 192")
    e("    s_add_u32 s30, s30, %d" % BRAW)
    e("    v_lshrrev_b32 v%d, 4, v%d" % (T4, T1))
    e("    v_lshl_add_u32 v%d, v%d, 3, s30" % (vBR, T4))
    e("    s_mul_i32 s31, s29, 12288             ; 2p*SLOT")
    e("    v_and_b32 v%d, 15, v%d" % (T5, T1))
    e("    v_lshrrev_b32 v%d, 1, v%d" % (T2, T5))
    e("    v_and_b32 v%d, 4, v%d" % (T2, T2))
    e("    v_and_or_b32 v%d, v%d, 3, v%d" % (T2, T5, T2))
    e("    v_mul_u32_u24 v%d, 384, v%d" % (T3, T5))
    e("    v_add_u32 v%d, s31, v%d" % (T3, T3))
    e("    v_xor_b32 v%d, v%d, v%d" % (vXR0, T4, T2))
    e("    v_lshl_add_u32 v%d, v%d, 4, v%d" % (vXR0, vXR0, T3))
    e("    v_xor_b32 v%d, 64, v%d" % (vXR1, vXR0))
    e("    v_lshrrev_b32 v%d, 1, v%d" % (T0, T4))
    e("    v_xor_b32 v%d, v%d, v%d" % (T2, T2, T0))
    e("    v_lshlrev_b32 v%d, 4, v%d" % (T2, T2))
    e("    v_and_b32 v%d, 1, v%d" % (T5, T4))
    e("    v_lshl_add_u32 v%d, v%d, 3, v%d" % (T3, T5, T3))
    e("    v_add_u32 v%d, %d, v%d" % (T3, OS, T3))
    e("    s_mul_i32 s32, s28, 6")
    for Tp in range(6):
        e("    s_add_u32 s33, s32, %d" % Tp)
        e("    s_and_b32 s34, s33, 3")
        e("    s_lshl_b32 s%d, s34, 5" % (86+Tp))
        e("    s_lshr_b32 s33, s33, 2")
        e("    s_lshl_b32 s%d, s33, 7" % (80+Tp))
        e("    v_xor_b32 v%d, s%d, v%d" % (vOW[Tp], 86+Tp, T2))
        e("    v_add3_u32 v%d, v%d, s%d, v%d" % (vOW[Tp], vOW[Tp], 80+Tp, T3))
    e("    v_bfe_u32 v%d, v%d, 2, 2" % (T3, T1))
    e("    v_lshl_add_u32 v%d, v%d, 2, v%d" % (T2, T5, T3))
    e("    v_lshl_add_u32 v%d, v%d, 3, v%d" % (T3, T5, T3))
    e("    v_mul_u32_u24 v%d, 384, v%d" % (T3, T3))
    e("    v_mul_u32_u24 v%d, 6144, v%d" % (T0, T0))
    e("    v_add_u32 v%d, v%d, v%d" % (T3, T3, T0))
    e("    v_bfe_u32 v%d, v%d, 1, 1" % (T0, T1))
    e("    v_xor_b32 v%d, v%d, v%d" % (T2, T2, T0))
    e("    v_lshlrev_b32 v%d, 4, v%d" % (T2, T2))
    e("    v_and_b32 v%d, 1, v%d" % (T0, T1))
    e("    v_lshl_add_u32 v%d, v%d, 3, v%d" % (T3, T0, T3))
    e("    v_add_u32 v%d, %d, v%d" % (T3, WB, T3))
    for Tp in range(6):
        e("    v_xor_b32 v%d, s%d, v%d" % (TR+Tp, 86+Tp, T2))
        e("    v_add3_u32 v%d, v%d, s%d, v%d" % (TR+Tp, TR+Tp, 80+Tp, T3))
    e("    s_mov_b32 s34, 0")
    e("    s_waitcnt lgkmcnt(0)")
    e("    s_barrier                             ; B1")
    stamp(1)
    for Tp in range(6):
        lds(('B',), "    ds_read_b64 v[%d:%d], v%d offset:%d" % (BIAS+4*Tp+2, BIAS+4*Tp+3, vBR, 32*Tp))
    n = 0
    for Tp in range(6):
        for s in range(6):
            for h in range(2):
                lds(('WT',), "    ds_read_b64_tr_b16 %s, v%d offset:%d" % (wh(Tp, s, h), TR+Tp, s*12288 + 1536*h))
                n += 1
                if n == 12:
                    waitl([('B',)])
                    for Tq in range(6):
                        b = BIAS + 4*Tq
                        e("    v_lshlrev_b32 v%d, 16, v%d" % (b, b+2))
                        e("    v_and_b32 v%d, 0xffff0000, v%d" % (b+1, b+2))
                        e("    v_lshlrev_b32 v%d, 16, v%d" % (b+2, b+3))
                        e("    v_and_b32 v%d, 0xffff0000, v%d" % (b+3, b+3))
    if cprio is not None: e("    s_setprio %d" % cprio[0])
    waitl_all()
    e("L_loop:")
    for par in range(2):
        if cst:
            e("    s_memrealtime s[92:93]")
            e("    s_lshl_b32 m0, s34, 1")
            e("    s_waitcnt lgkmcnt(0)")
            e("    s_movreld_b32 s%d, s92" % (48 + 4 + 2*par))
        e("    s_barrier                             ; R(r)")
        def cs(k):
            if cyc and par == 1: e("    s_memtime s[%d:%d]" % (48+2*k, 49+2*k))
        cs(2)
        for tb in range(2):
            for s in range(6):
                lds(('XR', tb, s), "    ds_read_b128 %s, v%d offset:%d" % (q(XF[tb] + 4*s), vXR1 if (s&1) else vXR0, XS + par*SET + tb*SLOT + 128*(s>>1)))
        def epi_ops(U):
            tb = U//6; Tp = U%6
            a = ACC + 4*(U%4)
            o = []
            o.append("    v_cvt_pk_bf16_f32 v%d, v%d, v%d" % (a, a, a+1))
            o.append("    v_cvt_pk_bf16_f32 v%d, v%d, v%d" % (a+1, a+2, a+3))
            o.append(('OW', "    ds_write_b64 v%d, v[%d:%d] offset:%d" % (vOW[Tp], a, a+1, par*SET + tb*SLOT)))
            return o
        def emit(o):
            if isinstance(o, tuple): lds((o[0],), o[1])
            else: e(o)
        fill = []
        if cprio is not None: e("    s_setprio %d" % cprio[1])
        for U in range(12):
            tb = U//6; Tp = U%6
            for s in range(6):
                if Tp == 0: waitl([('XR', tb, s)])
                a = ACC + 4*(U%4)
                c = q(BIAS + 4*Tp) if s == 0 else q(a)
                e("    v_mfma_f32_16x16x32_bf16 %s, %s, %s, %s" % (q(a), wq(Tp, s), q(XF[tb] + 4*s), c))
                if (U, s) == (0, 0): cs(3)
                if (U, s) == (0, 5): cs(4)
                if (U, s) == (5, 5): cs(5)
                if (U, s) == (6, 5): cs(6)
                if (U, s) == (11, 5): cs(7)
                if s == 1 and U >= 2: fill.extend(epi_ops(U-2))
                for _ in range(1 if spread else 3):
                    if fill: emit(fill.pop(0))
        while fill: emit(fill.pop(0))
        e("    s_nop 1")
        for o in epi_ops(10): emit(o)
        e("    s_nop 2")
        for o in epi_ops(11): emit(o)
        if cprio is not None: e("    s_setprio %d" % cprio[0])
        waitl_all()
        cs(8)
        if par == 0:
            e("    s_cmp_eq_u32 s34, 8")
            e("    s_cbranch_scc1 L_cdone")
        else:
            e("    s_add_u32 s34, s34, 2")
            e("    s_branch L_loop")
    e("L_cdone:")
    if cst: stamp(11)
    e("    s_barrier                             ; F")
    if not cst: stamp(11)
    e("L_fin:")
    if stamps:
        e("    s_mov_b32 s78, 0")
        e("    s_getreg_b32 s72, hwreg(HW_REG_XCC_ID, 0, 4)")
        e("    s_mul_i32 s72, s72, 100")
        e("    s_add_u32 s72, s72, s48")
        e("    s_mov_b32 s42, 0x100000")
        e("    s_mov_b32 s43, 0x00020000")
        e("    s_lshl_b32 s37, s2, 3")
        e("    s_add_u32 s37, s37, s3")
        e("    s_lshl_b32 s37, s37, 6")
        e("    s_mov_b64 exec, 1")
        e("    v_mov_b32 v1, 0")
        for k in range(16):
            e("    v_mov_b32 v2, s%d" % (48+2*k))
            e("    buffer_store_dword v2, v1, s[40:43], s37 offen offset:%d" % (4*k))
            e("    s_nop 1")
    e("L_end:")
    e("    s_endpgm")
    e('.section .rodata,"a"')
    e(".p2align 6")
    e(".amdhsa_kernel %s_kernel" % NAME)
    e("  .amdhsa_next_free_vgpr 256")
    e("  .amdhsa_next_free_sgpr 96")
    e("  .amdhsa_accum_offset 256")
    e("  .amdhsa_group_segment_fixed_size 0")
    e("  .amdhsa_kernarg_size 48")
    e("  .amdhsa_user_sgpr_count 2")
    e("  .amdhsa_user_sgpr_kernarg_segment_ptr 1")
    e("  .amdhsa_system_sgpr_workgroup_id_x 1")
    e(".end_amdhsa_kernel")
    if nomfma: L = [l for l in L if "v_mfma" not in l]
    return "\n".join(L) + "\n"

def build(vs, bx=512, lds=LDS):
    import subprocess, json
    args = []; files = ["work/bench"]
    for k, s in vs.items():
        open(k + ".s", "w").write(s)
        subprocess.check_call(["python3", "mkco.py", k + ".s", k + ".co"], stdout=subprocess.DEVNULL)
        r = subprocess.run(["python3", "cdna_unwritten_srd_check.py", k + ".co"], capture_output=True, text=True)
        if "ok" not in r.stdout: print("CHECK:", k, r.stdout[-500:], r.stderr[-500:])
        args.append("work/%s.co $K 256 %d %d" % (k, bx, lds))
        files.append("work/%s.co" % k)
    print(" ".join(args))
    print(json.dumps(files))
```

```python
from gen_v10 import *
D = dict(hpat="ilv", cprio=(3,0), hprio=2)
def G(p, m, pre2, q):
    o = ("x%d," % p if p else "") + "b,w18,x%d" % m
    return dict(order=o, pre2=pre2, quota=(q,)*9 if isinstance(q, int) else q)
S4 = [G(0,12,6,9), G(8,10,5,9), G(16,10,5,8), G(24,10,5,7)]
S4b = [G(0,12,6,9), G(6,10,5,9), G(12,10,5,8), G(18,10,5,8)]
S4c = [G(0,12,6,10), G(8,10,5,9), G(16,10,5,8), G(24,10,5,8)]
S2 = [G(0,12,6,9), G(14,10,5,8)]
S8 = [G(0,12,6,9), G(4,10,5,9), G(8,10,5,9), G(12,10,5,8), G(16,10,5,8), G(20,10,5,8), G(24,10,5,7), G(28,10,5,7)]
V = {
  "a": dict(D),
  "b": dict(D, groups=S4),
  "c": dict(D, groups=S4b),
  "d": dict(D, groups=S4c),
  "e": dict(D, groups=S2),
  "f": dict(D, groups=S8),
}
build({("ks_"+k): gen(stamps=True, cst=True, **v) for k, v in V.items()})
build({("k_"+k): gen(**v) for k, v in V.items()})
```

```python
from gen_v10 import *
D = dict(hpat="ilv", cprio=(3,0), hprio=2)
def G(p, m, pre2, q):
    o = ("x%d," % p if p else "") + "b,w18,x%d" % m
    return dict(order=o, pre2=pre2, quota=(q,)*9 if isinstance(q, int) else q)
def S(P, Q, m=10, pre2=5):
    return [G(p, 12 if p == 0 else m, 6 if p == 0 else pre2, q) for p, q in zip(P, Q)]
V = {
  "a": dict(D, groups=S((0,6,12,18), (8,8,8,7))),
  "b": dict(D, groups=S((0,6,12,18), (7,7,7,7))),
  "c": dict(D, groups=S((0,6,12,18), (8,8,8,8)), spread=False),
  "d": dict(D, groups=S((0,5,10,15), (8,8,8,8)), spread=False),
  "e": dict(D, groups=S((0,6,12,18), (8,8,8,7)), spread=False),
  "f": dict(D, groups=S((0,6,12,18), (8,8,7,7)), spread=False),
  "g": dict(D, groups=S((0,6,12,18), (7,7,7,7)), spread=False),
  "h": dict(D, groups=S((0,4,8,12), (8,8,8,8)), spread=False),
}
build({("k_"+k): gen(**v) for k, v in V.items()})
```

```python
import sys
NAME = "standalone__standard_2d_1d_3d_conv__vision"
HDR = open('cdna_kernels/%s.s.ref' % NAME).read().split('; Override launch')[0]

SLOT = 6144
SET = 4*SLOT
XS = 0
OS = 2*SET
WB = 3*SET
BRAW = 6*SET
LDS = BRAW + 1024

G1 = [dict(order="x6,b,w18,x6", pre2=6, quota=(9,)*9)]

def gen(ld_flags=" nt", st_flags=" sc1", stamps=False, groups=G1, hprio=3, cprio=None, hpat="old", spread=True,
        amap="sweep", cst=False, cyc=False, nomfma=False, lead=1, win=None, winw=None, clk=False, dbg=False, span=False, mord=None, eb=False, fst=False, pre=0, cpf=False, pg=False, farw=False, cpos=None, touch=None, tmode=None, tflags=' nt', pcdbg=False, loc=None, worder=None, sorder=None, probe=None, tmap=None, gsh=3, ginv=False, talign=None):
    L = []
    e = L.append
    e(HDR.rstrip('\n'))
    e("; Override launch geometry by editing the next line (default: block=256,")
    e("; @launch grid=(256,1,1) block=(512,1,1) lds=%d" % LDS)
    e('.amdgcn_target "amdgcn-amd-amdhsa--gfx950"')
    e(".text")
    e(".globl %s_kernel" % NAME)
    if talign: e(".p2align %d" % talign)
    e(".p2align 8")
    e(".type %s_kernel,@function" % NAME)
    e("%s_kernel:" % NAME)
    def q(b): return "v[%d:%d]" % (b, b+3)
    pend = []; vm = []
    def lds(tag, text):
        e(text); pend.append(tag)
    def waitl(tags):
        idxs = [i for i, p in enumerate(pend) if p in tags]
        if idxs:
            idx = max(idxs); n = len(pend) - 1 - idx
            e("    s_waitcnt lgkmcnt(%d)" % min(n, 14))
            del pend[:idx+1]
    def waitl_all():
        e("    s_waitcnt lgkmcnt(0)"); del pend[:]
    def vmem(tag, text):
        e(text); vm.append(tag)
    def waitv(tags):
        idxs = [i for i, p in enumerate(vm) if p in tags]
        if idxs:
            idx = max(idxs); n = len(vm) - 1 - idx
            e("    s_waitcnt vmcnt(%d)" % min(n, 62))
            del vm[:idx+1]
    def stamp(k):
        if stamps:
            e("    s_memrealtime s[%d:%d]" % (48+2*k, 49+2*k))
            e("    s_waitcnt lgkmcnt(0)")
            del pend[:]
    T0=1; T1=2; T2=3; T3=4; T4=5; T5=6
    e("    s_cmp_ge_u32 s2, 256")
    e("    s_cbranch_scc1 L_end")
    stamp(0)
    if eb:
        e("    s_load_dwordx2 s[8:9], s[0:1], 0      ; x")
        e("    s_load_dwordx2 s[12:13], s[0:1], 8    ; w")
        e("    s_load_dwordx2 s[16:17], s[0:1], 16   ; b")
        e("    s_load_dwordx2 s[20:21], s[0:1], 24   ; out")
    else:
        e("    s_load_dwordx4 s[4:7], s[0:1], 0      ; x, w")
        e("    s_load_dwordx4 s[24:27], s[0:1], 16   ; b, out")
    if dbg:
        e("    s_memrealtime s[60:61]")
        e("    s_load_dwordx2 s[40:41], s[0:1], 32")
    if stamps:
        e("    s_load_dwordx2 s[40:41], s[0:1], 40")
        for k in range(1, 16): e("    s_mov_b32 s%d, s48" % (48+2*k))
    e("    v_lshrrev_b32 v%d, 6, v0" % T0)
    e("    v_and_b32 v%d, 63, v0" % T1)
    e("    v_readfirstlane_b32 s3, v%d" % T0)
    e("    s_mov_b32 s10, 56623104")
    e("    s_mov_b32 s11, 0x00020000")
    e("    s_mov_b32 s14, 73728")
    e("    s_mov_b32 s15, 0x00020000")
    if cpf:
        e("    s_cmp_ge_u32 s3, 4")
        e("    s_cbranch_scc1 L_helper")
        e("    s_getpc_b64 s[36:37]")
        e("L_pc:")
        e("    s_lshr_b32 s38, s2, 3")
        e("    s_lshl_b32 s38, s38, 2")
        e("    s_add_u32 s38, s38, s3                ; 0..127")
        e("    s_lshl_b32 s38, s38, 7")
        e("    s_min_u32 s38, s38, L_end-L_pc-4")
        e("    s_load_dword s96, s[36:37], s38")
        e("    s_branch L_compute")
        e("L_helper:")
    else:
        e("    s_cmp_lt_u32 s3, 4")
        e("    s_cbranch_scc1 L_compute")
    vXG = [8,9,10,11,12,13]; vLo = 14; vLx = 15; vLin = 7
    BUF = 16
    if hprio: e("    s_setprio %d" % hprio)
    if amap is None: gst, rofs = 221184, [r*SET for r in range(9)]
    elif amap == "sweep": gst, rofs = SET, [r*256*SET for r in range(9)]
    elif amap == "s3": gst, rofs = 3*SET, [(r//3)*256*3*SET + (r%3)*SET for r in range(9)]
    if worder: rofs = [w*256*SET for w in worder]
    vD = [232,233,234,235,236,237]; vA = [238,239,240,241]; acnt = [0]
    def lcalc():
        e("    s_bfe_u32 s84, s2, 0x10002            ; sg")
        e("    s_xor_b32 s85, s84, s2")
        e("    s_and_b32 s85, s85, 1")
        e("    s_cmp_eq_u32 s85, 0")
        e("    s_cselect_b32 s86, 5, 3")
        e("    s_mul_i32 s86, s86, %d             ; distance of the two sets" % SET)
        e("    s_andn2_b32 s84, s2, 5")
        e("    s_or_b32 s85, s85, s84")
        e("    s_mul_i32 s85, s85, %d" % SET)
        e("    s_add_u32 s84, s85, s29               ; + h*SLOT")
        e("    s_and_b32 s87, s2, 1")
        e("    s_xor_b32 s87, s87, %d" % (1 ^ loc['c']))
        e("    v_mov_b32 v%d, s86" % T3)
        for i in range(6):
            e("    v_add_u32 v%d, %d, v%d" % (T2, (i*1024 - 8064) & 0xffffffff, vLx))
            e("    v_cmp_gt_u32 vcc, 8448, v%d" % T2)
            e("    v_cndmask_b32 v%d, 0, v%d, vcc" % (vD[i], T3))
    def hcalc():
        for i in range(3):
            e("    v_add_u32 v%d, %d, v%d" % (T2, 64*i, T1))
            e("    v_mul_u32_u24 v%d, 2731, v%d" % (T2, T2))
            e("    v_bfe_u32 v%d, v%d, 16, 2" % (T3, T2))
            e("    v_xor_b32 v%d, v%d, v%d" % (T2, T3, T1))
            e("    v_lshlrev_b32 v%d, 4, v%d" % (vXG[i], T2))
            e("    v_xor_b32 v%d, 64, v%d" % (vXG[i+3], vXG[i]))
        e("    s_sub_u32 s3, s3, 4                   ; h")
        e("    s_mul_i32 s29, s3, 6144               ; h*SLOT")
        if tmap is None:
            e("    s_mul_i32 s28, s2, %d" % gst)
            e("    s_add_u32 s28, s28, s29")
        elif tmap == "a":
            e("    s_lshl_b32 s28, s3, 8")
            e("    s_add_u32 s28, s28, s2")
            e("    s_mul_i32 s28, s28, 6144")
        elif tmap == "b":
            e("    s_and_b32 s28, s2, 7")
            e("    s_lshl_b32 s28, s28, 5")
            e("    s_lshr_b32 s35, s2, 3")
            e("    s_add_u32 s28, s28, s35")
            e("    s_mul_i32 s28, s28, %d" % SET)
            e("    s_add_u32 s28, s28, s29")
        elif tmap == "c":
            e("    s_lshr_b32 s28, s2, 3")
            e("    s_lshl_b32 s28, s28, 2")
            e("    s_add_u32 s28, s28, s3")
            e("    s_lshl_b32 s28, s28, 3")
            e("    s_and_b32 s35, s2, 7")
            e("    s_add_u32 s28, s28, s35")
            e("    s_mul_i32 s28, s28, 6144")
        elif tmap == "d":
            e("    s_and_b32 s28, s2, 7")
            e("    s_lshl_b32 s28, s28, 2")
            e("    s_add_u32 s28, s28, s3")
            e("    s_lshl_b32 s28, s28, 5")
            e("    s_lshr_b32 s35, s2, 3")
            e("    s_add_u32 s28, s28, s35")
            e("    s_mul_i32 s28, s28, 6144")
        e("    s_mul_i32 s30, s3, 3")
        e("    s_lshr_b32 s35, s2, 3")
        e("    s_mul_i32 s37, s35, 43")
        e("    s_lshr_b32 s37, s37, 9")
        e("    s_mul_i32 s37, s37, 12")
        e("    s_sub_u32 s37, s35, s37               ; (g>>3) mod 12")
        e("    s_add_u32 s30, s30, s37")
        for a in range(3):
            e("    s_add_u32 s37, s30, %d" % a)
            e("    s_sub_u32 s38, s37, 12")
            e("    s_cmp_ge_u32 s37, 12")
            e("    s_cselect_b32 s37, s38, s37")
            e("    s_mul_i32 s%d, s37, 6144" % (44+a))
        e("    s_mov_b32 s18, 384")
        e("    s_mov_b32 s19, 0x00020000")
        e("    s_mov_b32 s22, 56623104")
        e("    s_mov_b32 s23, 0x00020000")
        e("    v_lshlrev_b32 v%d, 4, v%d" % (vLin, T1))
        e("    v_lshl_add_u32 v%d, v%d, 4, s29" % (vLx, T1))
        e("    v_add_u32 v%d, %d, v%d" % (vLo, OS, vLx))
        if loc and loc.get('early'): lcalc()
    ng = len(groups)
    if eb:
        if ng > 1:
            e("    s_bfe_u32 s36, s2, 0x%x" % (3 | ((ng.bit_length()-1) << 16)))
            for g in range(1, ng):
                e("    s_cmp_eq_u32 s36, %d" % g)
                e("    s_cbranch_scc1 L_hg%d" % g)
    else:
        hcalc()
        if ng > 1:
            if gsh == 3: e("    s_and_b32 s35, s35, %d" % (ng-1))
            else: e("    s_bfe_u32 s35, s2, 0x%x" % (gsh | ((ng.bit_length()-1) << 16)))
            if ginv: e("    s_xor_b32 s35, s35, %d" % (ng-1))
        e("    s_waitcnt lgkmcnt(0)")
        e("    s_mov_b32 s8, s4")
        e("    s_mov_b32 s9, s5")
        e("    s_mov_b32 s12, s6")
        e("    s_mov_b32 s13, s7")
        e("    s_mov_b32 s16, s24")
        e("    s_mov_b32 s17, s25")
        e("    s_mov_b32 s20, s26")
        e("    s_mov_b32 s21, s27")
    curwin = [None]
    sepso = any(G.get('mixq') for G in groups)
    def window(n):
        if n is not None and len(vm) >= n:
            e("    s_waitcnt vmcnt(%d)" % (n-1))
            del vm[:len(vm)-(n-1)]
    def gop(kind, r, i):
        window(curwin[0] if curwin[0] is not None else (win if not isinstance(win, tuple) else (win[0] if kind == 'L' else win[1])))
        sb = 38 if (kind == 'S' and sepso) else 33
        isloc = loc and r in loc['rounds']
        if isloc and kind == 'S' and sorder: sb = 90
        sT = 88 if kind == 'L' else 89
        if i == 0:
            e("    s_add_u32 s%d, s%d, %d" % (sb, 84 if isloc else 28, rofs[r]))
            e("    s_add_u32 s%d, s%d, %d" % (sb+1, 84 if isloc else 28, rofs[r] + 4096))
            if isloc:
                e("    s_add_u32 s%d, s85, %d" % (sT, rofs[r]))
                e("    s_bfe_u32 s%d, s%d, 0x10015" % (sT, sT))
                e("    s_cmp_lg_u32 s%d, s87" % sT)
                e("    s_cselect_b32 s%d, s86, 0" % sT)
        so = sb if i < 4 else sb+1
        off = (i%4)*1024 if i < 4 else (i-4)*1024
        va = vXG[i]
        if isloc:
            va = vA[acnt[0] % 4]; acnt[0] += 1
            e("    v_xad_u32 v%d, v%d, s%d, v%d" % (va, vD[i], sT, vXG[i]))
        if kind == 'L':
            vmem(('X', r, i), "    buffer_load_dwordx4 %s, v%d, s[8:11], s%d offen offset:%d%s" % (q(BUF + 24*r + 4*i), va, so, off, ld_flags(r, i) if callable(ld_flags) else ld_flags))
        else:
            waitl([('C', r, i)])
            vmem(('S', r), "    buffer_store_dwordx4 %s, v%d, s[20:23], s%d offen offset:%d%s" % (q(BUF + 24*r + 4*i), va, so, off, st_flags(r, i) if callable(st_flags) else st_flags))
    vm[:] = []
    if not eb:
        if fst and pre: e("    s_memrealtime s[50:51]")
        if farw:
            e("    s_cmp_eq_u32 s35, %d" % (ng-1))
            e("    s_cbranch_scc1 L_hg%d" % (ng-1))
        for n in range(pre): gop('L', n//6, n%6)
        for g in range(1, ng - (1 if farw else 0)):
            e("    s_cmp_eq_u32 s35, %d" % g)
            e("    s_cbranch_scc1 L_hg%d" % g)
    vm0 = list(vm)
    for gi, G in enumerate(groups):
        if gi:
            e("@@GROUP%d" % gi)
            if pg: e(".p2align 12")
            e("L_hg%d:" % gi)
        pend[:] = []; vm[:] = list(vm0)
        if farw and gi == ng-1: pre = 0; vm[:] = []
        if eb:
            hcalc()
            e("    s_waitcnt lgkmcnt(0)")
        if fst and not pre: e("    s_memrealtime s[50:51]")
        ops = [('L', r, i) for r in range(9) for i in range(6)] + [('S', r, i) for r in range(9) for i in range(6)]
        del ops[:pre]
        skip = pre
        collected = set()
        def issue(n):
            for _ in range(n):
                if not ops: return
                k, r, i = ops[0]
                if k == 'S' and r not in collected: return
                ops.pop(0)
                gop(k, r, i)
        wops = [(a, i) for a in range(3) for i in range(6)]
        def wissue(n):
            last = None
            for _ in range(n):
                a, i = wops.pop(0)
                window(winw)
                grp = (a, i >= 4)
                if grp != last:
                    e("    s_add_u32 m0, s%d, %d" % (44+a, WB + (4096 if i >= 4 else 0)))
                    e("    s_add_u32 s31, s%d, %d" % (44+a, (4096 if i >= 4 else 0)))
                    last = grp
                vmem(('W',), "    buffer_load_dwordx4 v%d, s[12:15], s31 offen offset:%d lds" % (vXG[i], (i%4)*1024))
        def feed1(r, i):
            assert ('L', r, i) not in ops, "feed of a tile piece whose load has not been issued"
            waitv([('X', r, i)])
            lds(('F', r), "    ds_write_b128 v%d, %s offset:%d" % (vLx, q(BUF + 24*r + 4*i), XS + (r&1)*SET + i*1024))
        def feed(r):
            waitv([('X', r, 5)])
            for i in range(6): feed1(r, i)
        def collect(r):
            for i in range(6):
                lds(('C', r, i), "    ds_read_b128 %s, v%d offset:%d" % (q(BUF + 24*r + 4*i), vLo, (r&1)*SET + i*1024))
            collected.add(r)
        fed0 = False
        for o in G['order'].split(","):
            if o[0] == 'x':
                assert int(o[1:]) >= skip
                issue(int(o[1:]) - skip); skip = 0
            elif o[0] == 'w': wissue(int(o[1:]))
            elif o == 'f': feed(0); fed0 = True
            elif o == 'b':
                e("    s_mov_b32 m0, %d" % BRAW)
                e("    s_nop 0")
                vmem(('W',), "    buffer_load_dwordx4 v%d, s[16:19], 0 offen lds      ; bias (all helpers write the same bytes)" % vLin)
        assert not wops
        if loc and not loc.get('early'): lcalc()
        if not fed0: feed(0)
        waitv([('W',)])
        waitl_all()
        for r in range(9):
            if cst: stamp(2 + r)
            e("    s_barrier                             ; R%d" % r)
            if not cst and clk != 2: stamp(2 + r)
            qn = G['quota'][r]
            if G.get('mixq'):
                nl, ns = G['mixq'][r]
                Ls = [o for o in ops if o[0] == 'L']; Ss = [o for o in ops if o[0] == 'S']
                av = [o for o in Ss if o[1] < r][:ns]
                lv = Ls[:nl]
                seq = []
                a, b = list(lv), list(av)
                if a: seq.append(a.pop(0))
                while a or b:
                    if a and (not b or len(a) >= len(b)): seq.append(a.pop(0))
                    else: seq.append(b.pop(0))
                rest = [o for o in ops if o not in seq]
                ops[:] = seq + rest
                qn = len(seq)
            curwin[0] = G['win'][r] if G.get('win') else None
            pat = G.get('pat')
            if pat and r + 1 < 9 and pat[r+1] == 'f' and pat[r] != 'f': lowprio_after = True
            else: lowprio_after = False
            if (hpat == "old" and not pat) or (pat and pat[r] == 'o'):
                if r >= 1: collect(r-1)
                if r + 1 <= 8: feed(r+1)
                issue(qn)
            else:
                n0 = len(ops)
                issue(lead)
                if r >= 1: collect(r-1)
                for k in range(6):
                    if n0 - len(ops) < qn: issue(1)
                    if r + 1 <= 8: feed1(r+1, k)
                issue(qn - (n0 - len(ops)))
            if lowprio_after: e("    s_setprio 0")
            waitl_all()
        if cst: stamp(11)
        e("    s_barrier                             ; F")
        if not cst and clk != 2: stamp(11)
        curwin[0] = None
        collect(8)
        issue(200)
        if stamps:
            stamp(13)
            e("    s_waitcnt vmcnt(0)")
            stamp(14)
            e("    s_add_u32 s3, s3, 4")
            e("    s_branch L_fin")
        elif dbg:
            e("    s_branch L_dbg")
        else:
            e("    s_endpgm")
    pend[:] = []; vm[:] = []
    e("@@CPRO")
    e("L_compute:")
    if probe:
        pb, pw, nl, ns = probe
        e("    s_mov_b32 s22, 56623104")
        e("    s_mov_b32 s23, 0x00020000")
        e("    s_lshl_b32 s35, s2, 14")
        e("    s_and_b32 s36, s3, 1")
        e("    s_lshl_b32 s36, s36, 13")
        e("    s_add_u32 s35, s35, s36")
        e("    s_lshr_b32 s36, s3, 1")
        e("    s_lshl_b32 s36, s36, 12")
        e("    s_add_u32 s35, s35, s36")
        e("    s_add_u32 s35, s35, %d" % pw)
        e("    v_and_b32 v7, %d, v0" % max(nl-1, 0))
        e("    v_lshlrev_b32 v7, 8, v7")
        e("    s_waitcnt lgkmcnt(0)")
        e("    s_mov_b32 s20, s%d" % (26 if pb == 'o' else 4))
        e("    s_mov_b32 s21, s%d" % (27 if pb == 'o' else 5))
        e("    s_memtime s[52:53]")
        for k in range(ns if nl == 0 else 0):
            e("    s_add_u32 s36, s35, %d" % (256*k))
            e("    s_load_dword s37, s[20:21], s36")
            e("    s_waitcnt lgkmcnt(0)")
            e("    s_memtime s[%d:%d]" % (54+2*k, 55+2*k))
        for k in range(ns if nl else 0):
            e("    buffer_load_dword v11, v7, s[20:23], s35 offen offset:%d nt" % (128*(k&1) + 2048*(k>>1) if nl <= 8 else 128*k))
            e("    s_waitcnt vmcnt(0)")
            e("    s_memtime s[%d:%d]" % (54+2*k, 55+2*k))
        e("    s_waitcnt lgkmcnt(0)")
    vXR0 = 8; vXR1 = 9; vOW = [12,13,14,15,16,17]; vBR = 10
    W = 20
    BIAS = 164
    XF = [188, 212]
    ACC = 236
    TRr = [252, 253, 254, 255, 18, 19]
    def wq(Tp, s): return q(W + 4*(Tp*6+s))
    def wh(Tp, s, h): return "v[%d:%d]" % (W + 4*(Tp*6+s) + 2*h, W + 4*(Tp*6+s) + 2*h + 1)
    e("    s_and_b32 s28, s3, 1                  ; hN")
    e("    s_lshr_b32 s29, s3, 1                 ; p")
    e("    s_mul_i32 s30, s28, 192")
    e("    s_add_u32 s30, s30, %d" % BRAW)
    e("    v_lshrrev_b32 v%d, 4, v%d" % (T4, T1))
    e("    v_lshl_add_u32 v%d, v%d, 3, s30" % (vBR, T4))
    e("    s_mul_i32 s31, s29, 12288             ; 2p*SLOT")
    e("    v_and_b32 v%d, 15, v%d" % (T5, T1))
    e("    v_lshrrev_b32 v%d, 1, v%d" % (T2, T5))
    e("    v_and_b32 v%d, 4, v%d" % (T2, T2))
    e("    v_and_or_b32 v%d, v%d, 3, v%d" % (T2, T5, T2))
    e("    v_mul_u32_u24 v%d, 384, v%d" % (T3, T5))
    e("    v_add_u32 v%d, s31, v%d" % (T3, T3))
    e("    v_xor_b32 v%d, v%d, v%d" % (vXR0, T4, T2))
    e("    v_lshl_add_u32 v%d, v%d, 4, v%d" % (vXR0, vXR0, T3))
    e("    v_xor_b32 v%d, 64, v%d" % (vXR1, vXR0))
    e("    v_lshrrev_b32 v%d, 1, v%d" % (T0, T4))
    e("    v_xor_b32 v%d, v%d, v%d" % (T2, T2, T0))
    e("    v_lshlrev_b32 v%d, 4, v%d" % (T2, T2))
    e("    v_and_b32 v%d, 1, v%d" % (T5, T4))
    e("    v_lshl_add_u32 v%d, v%d, 3, v%d" % (T3, T5, T3))
    e("    v_add_u32 v%d, %d, v%d" % (T3, OS, T3))
    e("    s_mul_i32 s32, s28, 6")
    for Tp in range(6):
        e("    s_add_u32 s33, s32, %d" % Tp)
        e("    s_and_b32 s34, s33, 3")
        e("    s_lshl_b32 s%d, s34, 5" % (86+Tp))
        e("    s_lshr_b32 s33, s33, 2")
        e("    s_lshl_b32 s%d, s33, 7" % (80+Tp))
        e("    v_xor_b32 v%d, s%d, v%d" % (vOW[Tp], 86+Tp, T2))
        e("    v_add3_u32 v%d, v%d, s%d, v%d" % (vOW[Tp], vOW[Tp], 80+Tp, T3))
    e("    v_bfe_u32 v%d, v%d, 2, 2" % (T3, T1))
    e("    v_lshl_add_u32 v%d, v%d, 2, v%d" % (T2, T5, T3))
    e("    v_lshl_add_u32 v%d, v%d, 3, v%d" % (T3, T5, T3))
    e("    v_mul_u32_u24 v%d, 384, v%d" % (T3, T3))
    e("    v_mul_u32_u24 v%d, 6144, v%d" % (T0, T0))
    e("    v_add_u32 v%d, v%d, v%d" % (T3, T3, T0))
    e("    v_bfe_u32 v%d, v%d, 1, 1" % (T0, T1))
    e("    v_xor_b32 v%d, v%d, v%d" % (T2, T2, T0))
    e("    v_lshlrev_b32 v%d, 4, v%d" % (T2, T2))
    e("    v_and_b32 v%d, 1, v%d" % (T0, T1))
    e("    v_lshl_add_u32 v%d, v%d, 3, v%d" % (T3, T0, T3))
    e("    v_add_u32 v%d, %d, v%d" % (T3, WB, T3))
    for Tp in range(6):
        e("    v_xor_b32 v%d, s%d, v%d" % (TRr[Tp], 86+Tp, T2))
        e("    v_add3_u32 v%d, v%d, s%d, v%d" % (TRr[Tp], TRr[Tp], 80+Tp, T3))
    e("    s_mov_b32 s34, 0")
    if cprio is not None: e("    s_setprio %d" % cprio[0])
    e("    s_waitcnt lgkmcnt(0)")
    def do_touch(which="o"):
        lab = "L_nt%d" % len(L)
        e("    s_cmp_lg_u32 s3, 0")
        e("    s_cbranch_scc1 %s" % lab)
        e("    s_mov_b32 s20, s26")
        e("    s_mov_b32 s21, s27")
        e("    s_mov_b32 s22, %d" % (0 if tmode == "null" else 56623104))
        e("    s_mov_b32 s23, 0x00020000")
        e("    s_mul_i32 s35, s2, %d" % SET)
        e("    v_and_b32 v7, 63, v0")
        if tmode == "4k":
            e("    v_mul_u32_u24 v11, 43, v7")
            e("    v_lshrrev_b32 v11, 8, v11            ; lane/6")
            e("    v_lshlrev_b32 v7, 12, v7")
            e("    v_mad_u32_u24 v7, v11, s36, v7" )
        else:
            e("    v_mul_u32_u24 v7, %d, v7" % (256*SET))
        e("    buffer_load_dword v11, v7, s[20:23], s35 offen%s" % tflags)
        if tmode == "xo":
            e("    s_mov_b32 s8, s4")
            e("    s_mov_b32 s9, s5")
            e("    buffer_load_dword v7, v7, s[8:11], s35 offen%s" % tflags)
        e(lab + ":")
    if tmode == "4k": e("    s_mov_b32 s36, %d" % (256*SET - 6*4096))
    if touch == "pro": do_touch()
    def emit(o):
        if isinstance(o, tuple): lds(o[0], o[1])
        else: e(o)
    def xread(par, tb, s_):
        return (('XR', tb, s_), "    ds_read_b128 %s, v%d offset:%d" % (q(XF[tb] + 4*s_), vXR1 if (s_&1) else vXR0, XS + par*SET + tb*SLOT + 128*(s_>>1)))
    def wread(Tp, s_, h):
        return (('WT', Tp, s_), "    ds_read_b64_tr_b16 %s, v%d offset:%d" % (wh(Tp, s_, h), TRr[Tp], s_*12288 + 1536*h))
    def bcvt(Tq):
        b = BIAS + 4*Tq
        return ["    v_lshlrev_b32 v%d, 16, v%d" % (b, b+2),
                "    v_and_b32 v%d, 0xffff0000, v%d" % (b+1, b+2),
                "    v_lshlrev_b32 v%d, 16, v%d" % (b+2, b+3),
                "    v_and_b32 v%d, 0xffff0000, v%d" % (b+3, b+3)]
    def round_body(par, first, slot):
        if cst:
            e("    s_memrealtime s[92:93]")
            e("    s_lshl_b32 m0, s34, 1")
            e("    s_waitcnt lgkmcnt(0)")
            e("    s_movreld_b32 s%d, s92" % slot)
        e("    s_barrier                             ; R(r)")
        if first and touch == "r0s": do_touch()
        side = []
        if first:
            for Tp in range(6):
                lds(('B',), "    ds_read_b64 v[%d:%d], v%d offset:%d" % (BIAS+4*Tp+2, BIAS+4*Tp+3, vBR, 32*Tp))
            for s_ in range(6):
                emit(wread(0, s_, 0)); emit(wread(0, s_, 1)); emit(xread(par, 0, s_))
            for s_ in range(6):
                emit(wread(1, s_, 0)); emit(wread(1, s_, 1))
            waitl([('B',)])
            for Tq in range(6):
                for o in bcvt(Tq): e(o)
            for Tp in range(2, 6):
                for s_ in range(6):
                    side.append(wread(Tp, s_, 0)); side.append(wread(Tp, s_, 1))
            for s_ in range(6): side.append(xread(par, 1, s_))
        else:
            for tb in range(2):
                for s_ in range(6): emit(xread(par, tb, s_))
        def epi_ops(U):
            tb = U//6; Tp = U%6
            a = ACC + 4*(U%4)
            o = []
            o.append("    v_cvt_pk_bf16_f32 v%d, v%d, v%d" % (a, a, a+1))
            o.append("    v_cvt_pk_bf16_f32 v%d, v%d, v%d" % (a+1, a+2, a+3))
            o.append((('OW',), "    ds_write_b64 v%d, v[%d:%d] offset:%d" % (vOW[Tp], a, a+1, par*SET + tb*SLOT)))
            return o
        fill = []
        if cprio is not None and not first: e("    s_setprio %d" % cprio[1])
        if mord is None or first:
            for U in range(12):
                tb = U//6; Tp = U%6
                if first and U == 5 and cprio is not None: e("    s_setprio %d" % cprio[1])
                for s_ in range(6):
                    waitl([('XR', tb, s_), ('WT', Tp, s_)])
                    a = ACC + 4*(U%4)
                    c = q(BIAS + 4*Tp) if s_ == 0 else q(a)
                    e("    v_mfma_f32_16x16x32_bf16 %s, %s, %s, %s" % (q(a), wq(Tp, s_), q(XF[tb] + 4*s_), c))
                    if (U, s_) == (7, 0) and clk == 2: e("    s_memtime s[92:93]")
                    if (U, s_) == (7, 2) and clk == 2: e("    s_memrealtime s[94:95]")
                    if (U, s_) == (11, 5) and clk == 2 and span: e("    s_memtime s[90:91]")
                    if s_ == 1 and U >= 2: fill.extend(epi_ops(U-2))
                    for _ in range(1 if spread else 3):
                        if fill: emit(fill.pop(0))
                    for _ in range(2):
                        if side: emit(side.pop(0))
            assert not side
            while fill: emit(fill.pop(0))
            e("    s_nop 1")
            for o in epi_ops(10): emit(o)
            e("    s_nop 2")
            for o in epi_ops(11): emit(o)
        else:
            if mord == "x": pairs = [((tb*6 + 2*k), (tb*6 + 2*k + 1)) for tb in range(2) for k in range(3)]
            else: pairs = [(Tp, 6 + Tp) for Tp in range(6)]
            def accof(P, j): return ACC + 4*(2*(P&1) + j)
            def epi2(P, j):
                U = pairs[P][j]; tb = U//6; Tp = U%6; a = accof(P, j)
                return ["    v_cvt_pk_bf16_f32 v%d, v%d, v%d" % (a, a, a+1),
                        "    v_cvt_pk_bf16_f32 v%d, v%d, v%d" % (a+1, a+2, a+3),
                        (('OW',), "    ds_write_b64 v%d, v[%d:%d] offset:%d" % (vOW[Tp], a, a+1, par*SET + tb*SLOT))]
            for P in range(6):
                for s_ in range(6):
                    for j in range(2):
                        U = pairs[P][j]; tb = U//6; Tp = U%6; a = accof(P, j)
                        waitl([('XR', tb, s_)])
                        c = q(BIAS + 4*Tp) if s_ == 0 else q(a)
                        e("    v_mfma_f32_16x16x32_bf16 %s, %s, %s, %s" % (q(a), wq(Tp, s_), q(XF[tb] + 4*s_), c))
                        if (P, s_, j) == (3, 3, 0) and clk == 2: e("    s_memtime s[92:93]")
                        if (P, s_, j) == (3, 3, 1) and clk == 2: e("    s_memrealtime s[94:95]")
                        if P >= 1 and (s_, j) == (4, 0):
                            for o in epi2(P-1, 0): emit(o)
                        if P >= 1 and (s_, j) == (5, 0):
                            for o in epi2(P-1, 1): emit(o)
            e("    s_nop 6")
            for o in epi2(5, 0): emit(o)
            for o in epi2(5, 1): emit(o)
        if cprio is not None: e("    s_setprio %d" % cprio[0])
        waitl_all()
        if clk == 2:
            if span:
                e("    s_sub_u32 s90, s90, s92")
                e("    s_cmp_eq_u32 s3, 1")
                e("    s_cselect_b32 s92, s90, s92")
            e("    s_cmp_lt_u32 s3, 2")
            e("    s_cselect_b32 s92, s92, s94")
            e("    s_lshl_b32 m0, s34, 1")
            e("    s_nop 0")
            e("    s_movreld_b32 s%d, s92" % slot)
    if pg or cpos: e("    s_branch L_cmain")
    e("@@CMAIN")
    if pg: e(".p2align 12")
    if pg or cpos: e("L_cmain:")
    round_body(0, True, 52)
    if touch == "r0": do_touch()
    e("L_loop:")
    round_body(1, False, 54)
    round_body(0, False, 56)
    e("    s_add_u32 s34, s34, 2")
    e("    s_cmp_lt_u32 s34, 8")
    e("    s_cbranch_scc1 L_loop")
    e("L_cdone:")
    if cst: stamp(11)
    e("    s_barrier                             ; F")
    if clk == 2:
        e("    s_memtime s[92:93]")
        e("    s_memrealtime s[94:95]")
        e("    s_waitcnt lgkmcnt(0)")
        e("    s_cmp_lt_u32 s3, 2")
        e("    s_cselect_b32 s70, s92, s94")
    elif clk:
        e("    s_memtime s[70:71]")
        e("    s_waitcnt lgkmcnt(0)")
    elif not cst: stamp(11)
    e("L_fin:")
    if pcdbg:
        e("    s_load_dwordx2 s[40:41], s[0:1], 32")
        e("    s_getpc_b64 s[36:37]")
        e("    s_mov_b32 s42, 256")
        e("    s_mov_b32 s43, 0x00020000")
        e("    s_mov_b64 exec, 1")
        e("    v_mov_b32 v1, 0")
        e("    v_mov_b32 v2, s36")
        e("    v_mov_b32 v3, s37")
        e("    s_waitcnt lgkmcnt(0)")
        e("    buffer_store_dwordx2 v[2:3], v1, s[40:43], 0 offen")
    if stamps:
        e("    s_mov_b32 s78, 0")
        e("    s_getreg_b32 s72, hwreg(HW_REG_XCC_ID, 0, 4)")
        e("    s_mul_i32 s72, s72, 100")
        e("    s_add_u32 s72, s72, s48")
        e("    s_mov_b32 s42, 0x100000")
        e("    s_mov_b32 s43, 0x00020000")
        e("    s_lshl_b32 s37, s2, 3")
        e("    s_add_u32 s37, s37, s3")
        e("    s_lshl_b32 s37, s37, 6")
        e("    s_mov_b64 exec, 1")
        e("    v_mov_b32 v1, 0")
        for k in range(16):
            e("    v_mov_b32 v2, s%d" % (48+2*k))
            e("    buffer_store_dword v2, v1, s[40:43], s37 offen offset:%d" % (4*k))
            e("    s_nop 1")
    if dbg:
        e("    s_endpgm")
        e("L_dbg:")
        e("    s_waitcnt vmcnt(0)")
        e("    s_memrealtime s[62:63]")
        e("    s_getreg_b32 s64, hwreg(HW_REG_XCC_ID, 0, 4)")
        e("    s_mov_b32 s42, 256")
        e("    s_mov_b32 s43, 0x00020000")
        e("    s_lshl_b32 s37, s64, 2")
        e("    s_mov_b64 exec, 1")
        e("    v_mov_b32 v1, 0")
        e("    s_waitcnt lgkmcnt(0)")
        e("    s_and_b32 s60, s60, 0xfffff")
        e("    s_and_b32 s62, s62, 0xfffff")
        e("    s_sub_u32 s60, 0x100000, s60")
        e("    v_mov_b32 v2, s60")
        e("    v_mov_b32 v3, s62")
        e("    buffer_atomic_umax v2, v1, s[40:43], s37 offen")
        e("    buffer_atomic_umax v3, v1, s[40:43], s37 offen offset:32")
    e("L_end:")
    e("    s_endpgm")
    e('.section .rodata,"a"')
    e(".p2align 6")
    e(".amdhsa_kernel %s_kernel" % NAME)
    e("  .amdhsa_next_free_vgpr 256")
    e("  .amdhsa_next_free_sgpr %d" % (98 if cpf else 96))
    e("  .amdhsa_accum_offset 256")
    e("  .amdhsa_group_segment_fixed_size 0")
    e("  .amdhsa_kernarg_size 48")
    e("  .amdhsa_user_sgpr_count 2")
    e("  .amdhsa_user_sgpr_kernarg_segment_ptr 1")
    e("  .amdhsa_system_sgpr_workgroup_id_x 1")
    e(".end_amdhsa_kernel")
    if pg and len(groups) > 1:
        a, b, c = L.index("@@GROUP1"), L.index("@@CPRO"), L.index("@@CMAIN")
        L = L[:a] + L[b:c] + L[a:b] + L[c:]
    if cpos:
        a, b, c = L.index("@@GROUP%d" % cpos), L.index("@@CPRO"), L.index("@@CMAIN")
        L = L[:a] + L[b:c] + L[a:b] + L[c:]
    L = [l for l in L if not l.startswith("@@")]
    if nomfma: L = [l for l in L if "v_mfma" not in l]
    return "\n".join(L) + "\n"

def build(vs, bx=512, lds=LDS):
    import subprocess, json
    args = []; files = ["work/bench"]
    for k, s in vs.items():
        open(k + ".s", "w").write(s)
        subprocess.check_call(["python3", "mkco.py", k + ".s", k + ".co"], stdout=subprocess.DEVNULL)
        r = subprocess.run(["python3", "cdna_unwritten_srd_check.py", k + ".co"], capture_output=True, text=True)
        if "ok" not in r.stdout: print("CHECK:", k, r.stdout[-500:], r.stderr[-500:])
        args.append("work/%s.co $K 256 %d %d" % (k, bx, lds))
        files.append("work/%s.co" % k)
    print(" ".join(args))
    print(json.dumps(files))
```

```python
from gen_v12 import *
DS = dict(hpat="ilv", cprio=(3,0), hprio=2, spread=True)
def G(p, m, q, win=None, mixq=None):
    o = ("x%d," % p if p else "") + "b,w18,x%d" % m
    return dict(order=o, quota=(q,)*9 if isinstance(q, int) else q, win=win, mixq=mixq)
def S(Q, w, m=12, m0=14, P=(0,6,12,18), mixq=None):
    if isinstance(Q[0], int): Q = [Q]*4
    return [G(p, m0 if p == 0 else m, Q[k], tuple(w) + (None,)*(9-len(w)), mixq) for k, p in enumerate(P)]
q8 = (8,8,8,8,8,8,9,9,9)
def F(fn): return lambda r,i: " sc1 nt" if fn(r,i) else " sc1"
m23 = F(lambda r,i: i%3!=0); m13 = F(lambda r,i: i%3==0); sc1 = F(lambda r,i: False)
B = dict(DS, cpos=2, gsh=5, groups=S(q8, (4,)), st_flags=m23)
ALL = dict(rounds=set(range(9)), c=0, early=True)
V = {
  "c0": dict(B, stamps=True, clk=2, span=True),
  "c2": dict(B, loc=ALL, st_flags=m13, stamps=True, clk=2, span=True, groups=S((8,8,8,8,10,10,10,10,10), (4,))),
}
build({("L_"+k): gen(**v) for k, v in V.items()})
```

```python
from gen_v12 import *
DS = dict(hpat="ilv", cprio=(3,0), hprio=2, spread=True)
def G(p, m, q, win=None, mixq=None):
    o = ("x%d," % p if p else "") + "b,w18,x%d" % m
    return dict(order=o, quota=(q,)*9 if isinstance(q, int) else q, win=win, mixq=mixq)
def S(Q, w, m=12, m0=14, P=(0,6,12,18), mixq=None):
    if isinstance(Q[0], int): Q = [Q]*4
    return [G(p, m0 if p == 0 else m, Q[k], tuple(w) + (None,)*(9-len(w)), mixq) for k, p in enumerate(P)]
q8 = (8,8,8,8,8,8,9,9,9)
def F(fn): return lambda r,i: " sc1 nt" if fn(r,i) else " sc1"
m23 = F(lambda r,i: i%3!=0); m13 = F(lambda r,i: i%3==0); sc1 = F(lambda r,i: False)
B = dict(DS, cpos=2, gsh=5, groups=S(q8, (4,)), st_flags=m23)
ALL = dict(rounds=set(range(9)), c=0, early=True)
V = {
  "0": dict(B),
  "1": dict(B, hprio=3),
  "2": dict(B, hprio=1),
  "3": dict(B, cprio=(3,1)),
  "4": dict(B, lead=2),
  "5": dict(B, lead=0),
  "6": dict(B, groups=S(q8, (4,), P=(0,4,8,12), m=14, m0=16)),
  "7": dict(B, groups=S(q8, (4,), P=(0,8,16,24), m=9, m0=12)),
  "8": dict(B, groups=S(q8, (4,), P=(2,8,14,20), m=11, m0=11)),
  "9": dict(B, cpos=3),
  "a": dict(B, groups=S(q8, (4,), P=(0,6,12,18), m=12, m0=16)),
  "b": dict(B, groups=S(q8, (5,), P=(0,6,12,18), m=12, m0=14)),
}
build({("H_"+k): gen(**v) for k, v in V.items()})
```
